```python
import torch

def _softmax(x, axis=-1):
    return torch.softmax(x, dim=axis)
def _gelu(x):
    return torch.nn.functional.gelu(x, approximate="tanh")
def _silu(x):
    return torch.nn.functional.silu(x)
def _sigmoid(x):
    return torch.sigmoid(x)
def _layernorm(x, axis=-1, eps=1e-5):
    m = x.mean(dim=axis, keepdim=True)
    v = x.var(dim=axis, keepdim=True, unbiased=False)
    return (x - m) / torch.sqrt(v + eps)
def _scatter_add(tgt, idx, src, axis=0):
    return tgt.clone().index_add_(axis, idx, src)
def _segment_sum(src, seg, n):
    out = torch.zeros((n,) + src.shape[1:], dtype=src.dtype)
    return out.index_add_(0, seg, src)
def _pad(x, pw):
    flat = tuple(v for pair in reversed(pw) for v in pair)
    return torch.nn.functional.pad(x, flat)

kernel_name = 'recurrent_scan__sliding_block_cached__mixer_token_mlp__decode'

def setup_inputs():

    _w = (lambda a: (lambda t: t.to(torch.bfloat16) if t.is_floating_point() else t)(torch.as_tensor(a)))
    def _A_setup():
        B, Sq, D = 1, 1, 640
        Hq, Hkv, Sk, Dh = 32, 32, 32768, 192
        assert Hq % Hkv == 0, (Hq, Hkv)
        return {
            "x": _w((lambda *s: torch.randn(*s, dtype=torch.bfloat16) * 0.1)(B, Sq, D)),
            "k_cache": _w((lambda *s: torch.randn(*s, dtype=torch.bfloat16) * 0.8)(B, Hkv, Sk, Dh)),
            "v_cache": _w((lambda *s: torch.randn(*s, dtype=torch.bfloat16) * 3.2)(B, Hkv, Sk, Dh)),
            "wq": _w((lambda *s: torch.randn(*s, dtype=torch.bfloat16) * 0.8)(D, Hq * Dh) * (D ** -0.5)),
            "wo": _w((lambda *s: torch.randn(*s, dtype=torch.bfloat16) * 3.2)(Hq * Dh, D) * ((Hq * Dh) ** -0.5)),
        }
    _A_in = _A_setup()

    def _B_setup():
        B, S, D, F = 1, 1, 640, 1536
        return {
            "x": _w((lambda *s: torch.randn(*s, dtype=torch.bfloat16) * 0.1)(B, S, D)),
            "w1": _w((lambda *s: torch.randn(*s, dtype=torch.bfloat16) * 3.2)(S, F) * (S ** -0.5)),
            "b1": _w((lambda *s: torch.randn(*s, dtype=torch.bfloat16) * 3.2)(F) * 0.02),
            "w2": _w((lambda *s: torch.randn(*s, dtype=torch.bfloat16) * 3.2)(F, S) * (F ** -0.5)),
            "b2": _w((lambda *s: torch.randn(*s, dtype=torch.bfloat16) * 3.2)(S) * 0.02),
        }
    _B_in = _B_setup()

    return {
        "A_x": _A_in["x"],
        "A_k_cache": _A_in["k_cache"],
        "A_v_cache": _A_in["v_cache"],
        "A_wq": _A_in["wq"],
        "A_wo": _A_in["wo"],
        "B_x": _B_in["x"],
        "B_w1": _B_in["w1"],
        "B_b1": _B_in["b1"],
        "B_w2": _B_in["w2"],
        "B_b2": _B_in["b2"],
    }

def reference(A_x, A_k_cache, A_v_cache, A_wq, A_wo, B_x, B_w1, B_b1, B_w2, B_b2):
    def _A_ref(x, k_cache, v_cache, wq, wo):
        B, Sq, D = x.shape
        Hq, Dh = 32, 192
        Hkv, Sk = k_cache.shape[1], k_cache.shape[2]
        W = min(4096, max(256, Sk // 4))
        rep = Hq // Hkv
        q = (lambda x, *d: x.permute(*d))((x @ wq).reshape(B, Sq, Hq, Dh), 0, 2, 1, 3)
        k = (lambda x, n, axis: torch.repeat_interleave(x, n, dim=axis))(k_cache[:, :, Sk - W:, :], rep, axis=1)
        v = (lambda x, n, axis: torch.repeat_interleave(x, n, dim=axis))(v_cache[:, :, Sk - W:, :], rep, axis=1)
        scores = torch.einsum("bhqd,bhkd->bhqk", q, k) * (Dh ** -0.5)
        p = _softmax(scores, axis=-1)
        o = torch.einsum("bhqk,bhkd->bhqd", p, v)
        return (lambda x, *d: x.permute(*d))(o, 0, 2, 1, 3).reshape(B, Sq, Hq * Dh) @ wo

    def _B_ref(x, w1, b1, w2, b2):
        B, S, D = x.shape
        h = _layernorm(x, axis=-1)
        u = torch.einsum("bsd,sf->bdf", h, w1) + b1
        u = _gelu(u)
        y = torch.einsum("bdf,fs->bds", u, w2) + b2
        return (lambda x, *d: x.permute(*d))(y, 0, 2, 1)

    x = A_x
    xn = _layernorm(x, axis=-1)
    s = _A_ref(xn, A_k_cache, A_v_cache, A_wq, A_wo)
    g = _silu(_B_ref(xn, B_w1, B_b1, B_w2, B_b2))
    return x + s * g
```

```python
import sys

NAME = "recurrent_scan__sliding_block_cached__mixer_token_mlp__decode"
OUT = "cdna_kernels/%s.s" % NAME

HEADER = open("cdna_kernels/%s.s.ref" % NAME).read().split("; Override launch")[0]

WS_Q = 0
WS_G = 0x20000
WS_P = 0x40000
WS_O = 0x100000
WS_BYTES = 0x200000

NSPLIT = 16
KSPLIT = 4

L = []
def e(s=""):
    L.append(s)

def kernel_begin(name):
    e(".globl %s" % name)
    e(".p2align 8")
    e(".type %s,@function" % name)
    e("%s:" % name)

def srd(d, lo, hi, nbytes):
    e("s_mov_b32 s%d, s%d" % (d, lo))
    e("s_and_b32 s%d, s%d, 0xffff" % (d + 1, hi))
    e("s_mov_b32 s%d, 0x%x" % (d + 2, nbytes))
    e("s_mov_b32 s%d, 0x00020000" % (d + 3))

def wave_sum(v, tmp_s):
    e("s_nop 1")
    e("v_add_f32_dpp v%d, v%d, v%d quad_perm:[1,0,3,2] row_mask:0xf bank_mask:0xf" % (v, v, v))
    e("s_nop 1")
    e("v_add_f32_dpp v%d, v%d, v%d quad_perm:[2,3,0,1] row_mask:0xf bank_mask:0xf" % (v, v, v))
    e("s_nop 1")
    e("v_add_f32_dpp v%d, v%d, v%d row_half_mirror row_mask:0xf bank_mask:0xf" % (v, v, v))
    e("s_nop 1")
    e("v_add_f32_dpp v%d, v%d, v%d row_mirror row_mask:0xf bank_mask:0xf" % (v, v, v))
    e("s_nop 1")
    e("v_add_f32_dpp v%d, v%d, v%d row_bcast:15 row_mask:0xa bank_mask:0xf" % (v, v, v))
    e("s_nop 1")
    e("v_add_f32_dpp v%d, v%d, v%d row_bcast:31 row_mask:0xc bank_mask:0xf" % (v, v, v))
    e("s_nop 1")
    e("v_readlane_b32 s%d, v%d, 63" % (tmp_s, v))
    e("s_nop 3")

def rbf(v, tmp):
    e("v_cvt_pk_bf16_f32 v%d, v%d, v%d" % (tmp, v, v))
    e("v_lshlrev_b32 v%d, 16, v%d" % (v, tmp))

def layernorm(xv, n, t0, s0):
    e("v_mov_b32 v%d, v%d" % (t0, xv))
    for i in range(1, n):
        e("v_add_f32 v%d, v%d, v%d" % (t0, t0, xv + i))
    wave_sum(t0, s0)
    e("v_mov_b32 v%d, s%d" % (t0, s0))
    e("v_mul_f32 v%d, 0x3acccccd, v%d" % (t0, t0))
    e("v_mov_b32 v%d, 0" % (t0 + 1))
    for i in range(n):
        e("v_sub_f32 v%d, v%d, v%d" % (t0 + 2, xv + i, t0))
        e("v_fmac_f32 v%d, v%d, v%d" % (t0 + 1, t0 + 2, t0 + 2))
    wave_sum(t0 + 1, s0 + 1)
    e("v_mov_b32 v%d, s%d" % (t0 + 1, s0 + 1))
    e("v_mul_f32 v%d, 0x3acccccd, v%d" % (t0 + 1, t0 + 1))
    rbf(t0 + 1, t0 + 2)
    e("v_add_f32 v%d, 0x3727c5ac, v%d" % (t0 + 1, t0 + 1))
    rbf(t0 + 1, t0 + 2)
    e("v_sqrt_f32 v%d, v%d" % (t0 + 1, t0 + 1))
    e("s_nop 0")
    rbf(t0 + 1, t0 + 2)
    e("v_rcp_f32 v%d, v%d" % (t0 + 1, t0 + 1))
    e("s_nop 0")
    rbf(t0, t0 + 2)
    for i in range(n):
        e("v_sub_f32 v%d, v%d, v%d" % (xv + i, xv + i, t0))
        rbf(xv + i, t0 + 2)
        e("v_mul_f32 v%d, v%d, v%d" % (xv + i, xv + i, t0 + 1))
        rbf(xv + i, t0 + 2)

def descriptor(name, vgpr, sgpr=102):
    acc = (vgpr + 3) // 4 * 4
    e(".amdhsa_kernel %s" % name)
    e("  .amdhsa_next_free_vgpr %d" % vgpr)
    e("  .amdhsa_next_free_sgpr %d" % sgpr)
    e("  .amdhsa_accum_offset %d" % acc)
    e("  .amdhsa_group_segment_fixed_size 0")
    e("  .amdhsa_kernarg_size 104")
    e("  .amdhsa_user_sgpr_count 2")
    e("  .amdhsa_user_sgpr_kernarg_segment_ptr 1")
    e("  .amdhsa_system_sgpr_workgroup_id_x 1")
    e(".end_amdhsa_kernel")

K1_QWG = 96 * KSPLIT
K1_GWG = 160
K1_WG = K1_QWG + K1_GWG

def gen_k1():
    kernel_begin("k1_qproj_kernel")
    e("s_cmp_ge_u32 s2, %d" % K1_WG)
    e("s_cbranch_scc1 K1_END")
    e("s_load_dwordx2 s[4:5], s[0:1], 0")
    e("s_load_dwordx2 s[6:7], s[0:1], 24")
    e("s_load_dwordx2 s[8:9], s[0:1], 96")
    e("s_load_dwordx8 s[12:19], s[0:1], 48")
    e("s_waitcnt lgkmcnt(0)")
    srd(20, 4, 5, 1280)
    srd(24, 6, 7, 640 * 6144 * 2)
    srd(28, 8, 9, WS_BYTES)
    e("v_and_b32 v1, 63, v0")
    e("v_lshrrev_b32 v2, 6, v0")
    e("v_lshlrev_b32 v3, 2, v1")
    for i in range(5):
        e("buffer_load_dword v%d, v3, s[20:23], 0 offen offset:%d" % (10 + i, i * 256))
    e("s_cmp_ge_u32 s2, %d" % K1_QWG)
    e("s_cbranch_scc1 K1_NOW")
    e("s_mul_hi_u32 s33, s2, 0x2aaaaab")
    e("s_mul_i32 s34, s33, 96")
    e("s_sub_u32 s34, s2, s34")
    e("v_lshrrev_b32 v4, 3, v0")
    e("v_mul_u32_u24 v4, 12288, v4")
    e("v_and_b32 v5, 7, v0")
    e("v_lshl_add_u32 v4, v5, 4, v4")
    e("s_mul_i32 s35, s33, %d" % (160 * 12288))
    e("s_lshl_b32 s36, s34, 7")
    e("s_add_u32 s35, s35, s36")
    for i in range(5):
        e("buffer_load_dwordx4 v[%d:%d], v4, s[24:27], s35 offen" % (40 + 4 * i, 43 + 4 * i))
        if i < 4:
            e("s_add_u32 s35, s35, %d" % (32 * 12288))
    e("K1_NOW:")
    e("s_waitcnt vmcnt(5)")
    e("s_cmp_ge_u32 s2, %d" % K1_QWG)
    e("s_cbranch_scc0 K1_LN")
    e("s_waitcnt vmcnt(0)")
    e("K1_LN:")
    for i in range(5):
        e("v_lshlrev_b32 v%d, 16, v%d" % (20 + 2 * i, 10 + i))
        e("v_and_b32 v%d, 0xffff0000, v%d" % (21 + 2 * i, 10 + i))
    layernorm(20, 10, 30, 40)
    e("v_mul_u32_u24 v6, 2560, v2")
    e("v_lshl_add_u32 v7, v1, 3, v6")
    e("s_cmp_ge_u32 s2, %d" % K1_QWG)
    e("s_cbranch_scc1 K1_GATE")
    for i in range(5):
        e("ds_write_b64 v7, v[%d:%d] offset:%d" % (20 + 2 * i, 21 + 2 * i, i * 512))
    e("s_mul_i32 s36, s33, 640")
    e("v_lshrrev_b32 v8, 3, v0")
    e("v_lshl_add_u32 v8, v8, 2, v6")
    e("v_add_u32 v8, s36, v8")
    e("s_waitcnt lgkmcnt(0)")
    for i in range(5):
        e("ds_read_b32 v%d, v8 offset:%d" % (60 + i, i * 128))
    for c in range(8):
        e("v_mov_b32 v%d, 0" % (70 + c))
    e("s_waitcnt vmcnt(0) lgkmcnt(0)")
    for i in range(5):
        for d in range(4):
            e("v_lshlrev_b32 v9, 16, v%d" % (40 + 4 * i + d))
            e("v_fmac_f32 v%d, v9, v%d" % (70 + 2 * d, 60 + i))
            e("v_and_b32 v9, 0xffff0000, v%d" % (40 + 4 * i + d))
            e("v_fmac_f32 v%d, v9, v%d" % (71 + 2 * d, 60 + i))
    e("v_lshlrev_b32 v9, 5, v0")
    e("ds_write_b128 v9, v[70:73] offset:10240")
    e("ds_write_b128 v9, v[74:77] offset:10256")
    e("s_waitcnt lgkmcnt(0)")
    e("s_barrier")
    e("v_cmp_gt_u32 vcc, 64, v0")
    e("s_and_saveexec_b64 s[44:45], vcc")
    e("s_cbranch_execz K1_END")
    e("v_lshrrev_b32 v9, 3, v0")
    e("v_lshlrev_b32 v9, 5, v9")
    e("v_and_b32 v10, 7, v0")
    e("v_lshl_add_u32 v9, v10, 2, v9")
    for r in range(32):
        e("ds_read_b32 v%d, v9 offset:%d" % (80 + r, 10240 + r * 256))
    e("s_waitcnt lgkmcnt(0)")
    for r in range(1, 32):
        e("v_add_f32 v80, v80, v%d" % (80 + r))
    e("s_mul_i32 s36, s33, %d" % (6144 * 4))
    e("s_lshl_b32 s37, s34, 8")
    e("s_add_u32 s36, s36, s37")
    e("s_add_u32 s36, s36, %d" % WS_Q)
    e("v_lshlrev_b32 v9, 2, v0")
    e("buffer_store_dword v80, v9, s[28:31], s36 offen")
    e("s_branch K1_END")
    e("K1_GATE:")
    layernorm(20, 10, 30, 40)
    for i in range(5):
        e("ds_write_b64 v7, v[%d:%d] offset:%d" % (20 + 2 * i, 21 + 2 * i, i * 512))
    srd(48, 12, 13, 3072)
    srd(52, 14, 15, 3072)
    srd(56, 16, 17, 3072)
    srd(60, 18, 19, 2)
    e("v_lshlrev_b32 v8, 4, v1")
    for j in range(3):
        e("buffer_load_dwordx4 v[%d:%d], v8, s[48:51], 0 offen offset:%d" % (40 + 4 * j, 43 + 4 * j, j * 1024))
        e("buffer_load_dwordx4 v[%d:%d], v8, s[52:55], 0 offen offset:%d" % (52 + 4 * j, 55 + 4 * j, j * 1024))
        e("buffer_load_dwordx4 v[%d:%d], v8, s[56:59], 0 offen offset:%d" % (64 + 4 * j, 67 + 4 * j, j * 1024))
    e("v_mov_b32 v9, 0")
    e("buffer_load_ushort v76, v9, s[60:63], 0 offen")
    e("s_sub_u32 s33, s2, %d" % K1_QWG)
    e("s_lshl_b32 s33, s33, 2")
    e("v_add_u32 v9, s33, v2")
    e("v_lshl_add_u32 v10, v9, 2, v6")
    e("s_waitcnt lgkmcnt(0)")
    e("ds_read_b32 v11, v10")
    e("v_mov_b32 v12, 0")
    e("s_mov_b32 s34, 0x3d372713")
    e("s_mov_b32 s35, 0xc0135761")
    e("s_waitcnt vmcnt(0) lgkmcnt(0)")
    for j in range(3):
        for d in range(4):
            for half in range(2):
                op = "v_lshlrev_b32 v%d, 16, v%d" if half == 0 else "v_and_b32 v%d, 0xffff0000, v%d"
                e(op % (13, 40 + 4 * j + d))
                e(op % (14, 52 + 4 * j + d))
                e(op % (15, 64 + 4 * j + d))
                e("v_mul_f32 v13, v13, v11")
                rbf(13, 16)
                e("v_add_f32 v13, v13, v14")
                rbf(13, 16)
                e("v_mul_f32 v16, v13, v13")
                e("v_mul_f32 v16, s34, v16")
                e("v_fma_f32 v16, v16, v13, v13")
                e("v_mul_f32 v16, s35, v16")
                e("v_exp_f32 v16, v16")
                e("s_nop 0")
                e("v_add_f32 v16, 1.0, v16")
                e("v_rcp_f32 v16, v16")
                e("s_nop 0")
                e("v_mul_f32 v13, v13, v16")
                rbf(13, 16)
                e("v_fmac_f32 v12, v13, v15")
    wave_sum(12, 36)
    e("v_mov_b32 v12, s36")
    rbf(12, 16)
    e("v_lshlrev_b32 v76, 16, v76")
    e("v_add_f32 v12, v12, v76")
    rbf(12, 16)
    e("v_mul_f32 v13, 0xbfb8aa3b, v12")
    e("v_exp_f32 v13, v13")
    e("s_nop 0")
    e("v_add_f32 v13, 1.0, v13")
    e("v_rcp_f32 v13, v13")
    e("s_nop 0")
    e("v_mul_f32 v12, v12, v13")
    rbf(12, 16)
    e("v_cmp_eq_u32 vcc, 0, v1")
    e("s_and_saveexec_b64 s[44:45], vcc")
    e("s_cbranch_execz K1_END")
    e("v_lshlrev_b32 v9, 2, v9")
    e("s_mov_b32 s36, %d" % WS_G)
    e("buffer_store_dword v12, v9, s[28:31], s36 offen")
    e("K1_END:")
    e("s_endpgm")

K2_WG = 32 * NSPLIT
HEAD_STRIDE = 32768 * 384
KV_BYTES = 32 * HEAD_STRIDE
WIN0 = (32768 - 4096)
K2_LQ = 0
K2_LP = 512
K2_LM = 1536
K2_LA = 2048
K2_LDS = K2_LA + 12 * 72 * 32

def gen_k2():
    kernel_begin("k2_attn_kernel")
    e("s_cmp_ge_u32 s2, %d" % K2_WG)
    e("s_cbranch_scc1 K2_END")
    e("s_load_dwordx4 s[4:7], s[0:1], 8")
    e("s_load_dwordx2 s[8:9], s[0:1], 96")
    e("s_waitcnt lgkmcnt(0)")
    srd(12, 4, 5, KV_BYTES)
    srd(16, 6, 7, KV_BYTES)
    srd(20, 8, 9, WS_BYTES)
    e("v_and_b32 v1, 63, v0")
    e("v_lshrrev_b32 v2, 6, v0")
    e("s_nop 0")
    e("v_readfirstlane_b32 s24, v2")
    e("s_lshr_b32 s25, s2, 4")
    e("s_and_b32 s26, s2, 15")
    e("v_lshlrev_b32 v3, 2, v0")
    e("s_mul_i32 s27, s25, 768")
    e("s_add_u32 s27, s27, %d" % WS_Q)
    for ks in range(KSPLIT):
        e("buffer_load_dword v%d, v3, s[20:23], s27 offen" % (4 + ks))
        if ks < KSPLIT - 1:
            e("s_add_u32 s27, s27, %d" % (6144 * 4))
    e("s_mul_i32 s28, s25, %d" % HEAD_STRIDE)
    e("s_lshl_b32 s29, s26, 8")
    e("s_lshl_b32 s30, s24, 6")
    e("s_add_u32 s29, s29, s30")
    e("s_add_u32 s29, s29, %d" % WIN0)
    e("s_mul_i32 s29, s29, 384")
    e("s_add_u32 s28, s28, s29")
    e("v_and_b32 v8, 15, v1")
    e("v_mul_u32_u24 v8, 384, v8")
    e("v_lshrrev_b32 v9, 4, v1")
    e("v_lshl_add_u32 v8, v9, 4, v8")
    e("s_mov_b32 s29, s28")
    KR = 32
    VR = 128
    for T in range(4):
        for t in range(6):
            r = KR + (T * 6 + t) * 4
            e("buffer_load_dwordx4 v[%d:%d], v8, s[12:15], s29 offen offset:%d" % (r, r + 3, t * 64))
        if T < 3:
            e("s_add_u32 s29, s29, 6144")
    e("v_lshlrev_b32 v10, 4, v1")
    e("s_mov_b32 s29, s28")
    for n in range(24):
        r = VR + n * 4
        e("buffer_load_dwordx4 v[%d:%d], v10, s[16:19], s29 offen offset:%d" % (r, r + 3, (n % 4) * 1024))
        if n % 4 == 3 and n < 23:
            e("s_add_u32 s29, s29, 4096")
    e("v_lshrrev_b32 v11, 3, v0")
    e("v_mul_u32_u24 v11, %d, v11" % (72 * 32))
    e("v_and_b32 v12, 7, v0")
    e("v_lshl_add_u32 v11, v12, 5, v11")
    e("v_mov_b32 v12, 0")
    e("v_mov_b32 v13, 0")
    e("v_mov_b32 v14, 0")
    e("v_mov_b32 v15, 0")
    e("v_cmp_gt_u32 vcc, 96, v0")
    e("s_and_saveexec_b64 s[40:41], vcc")
    e("ds_write_b128 v11, v[12:15] offset:%d" % (K2_LA + 64 * 32))
    e("ds_write_b128 v11, v[12:15] offset:%d" % (K2_LA + 64 * 32 + 16))
    e("s_mov_b64 exec, s[40:41]")
    e("s_waitcnt vmcnt(48)")
    e("v_add_f32 v4, v4, v5")
    e("v_add_f32 v6, v6, v7")
    e("v_add_f32 v4, v4, v6")
    e("v_cvt_pk_bf16_f32 v4, v4, v4")
    e("v_lshlrev_b32 v5, 1, v0")
    e("v_cmp_gt_u32 vcc, 192, v0")
    e("s_and_saveexec_b64 s[40:41], vcc")
    e("ds_write_b16 v5, v4 offset:%d" % K2_LQ)
    e("s_mov_b64 exec, s[40:41]")
    e("s_waitcnt lgkmcnt(0)")
    e("s_barrier")
    QR = 224
    e("v_lshlrev_b32 v5, 4, v9")
    for t in range(6):
        e("ds_read_b128 v[%d:%d], v5 offset:%d" % (QR + 4 * t, QR + 4 * t + 3, K2_LQ + t * 64))
    SR = 12
    for i in range(16):
        e("v_mov_b32 v%d, 0" % (SR + i))
    e("s_waitcnt lgkmcnt(0)")
    for T in range(4):
        for t in range(6):
            r = KR + (T * 6 + t) * 4
            e("s_waitcnt vmcnt(%d)" % (47 - (T * 6 + t)))
            e("v_mfma_f32_16x16x32_bf16 v[%d:%d], v[%d:%d], v[%d:%d], v[%d:%d]" %
              (SR + 4 * T, SR + 4 * T + 3, r, r + 3, QR + 4 * t, QR + 4 * t + 3, SR + 4 * T, SR + 4 * T + 3))
    e("s_nop 7")
    e("s_nop 1")
    e("v_max3_f32 v28, v12, v13, v14")
    for i in range(3, 16, 2):
        if i + 1 < 16:
            e("v_max3_f32 v28, v28, v%d, v%d" % (SR + i, SR + i + 1))
        else:
            e("v_max_f32 v28, v28, v%d" % (SR + i))
    e("s_nop 1")
    e("v_readlane_b32 s32, v28, 0")
    e("v_readlane_b32 s33, v28, 16")
    e("v_readlane_b32 s34, v28, 32")
    e("v_readlane_b32 s35, v28, 48")
    e("s_nop 3")
    e("v_mov_b32 v28, s32")
    e("v_max_f32 v28, s33, v28")
    e("v_max_f32 v28, s34, v28")
    e("v_max_f32 v28, s35, v28")
    e("s_mov_b32 s36, 0x3dd53b95")
    e("v_mul_f32 v29, s36, v28")
    e("v_mov_b32 v30, 0")
    for i in range(16):
        e("v_fma_f32 v%d, v%d, s36, -v29" % (SR + i, SR + i))
        e("v_exp_f32 v%d, v%d" % (SR + i, SR + i))
        e("s_nop 0")
        e("v_add_f32 v30, v30, v%d" % (SR + i))
    e("s_nop 1")
    e("v_readlane_b32 s32, v30, 0")
    e("v_readlane_b32 s33, v30, 16")
    e("v_readlane_b32 s34, v30, 32")
    e("v_readlane_b32 s35, v30, 48")
    e("s_nop 3")
    e("v_mov_b32 v30, s32")
    e("v_add_f32 v30, s33, v30")
    e("v_add_f32 v30, s34, v30")
    e("v_add_f32 v30, s35, v30")
    e("v_lshlrev_b32 v31, 8, v2")
    e("v_lshl_add_u32 v5, v9, 4, v31")
    for T in range(4):
        e("ds_write_b128 v5, v[%d:%d] offset:%d" % (SR + 4 * T, SR + 4 * T + 3, K2_LP + T * 64))
    e("v_mov_b32 v29, v30")
    e("v_lshlrev_b32 v5, 3, v2")
    e("ds_write_b64 v5, v[28:29] offset:%d" % K2_LM)
    PR = 32
    for b in range(3):
        e("v_add_u32 v5, %d, v1" % (64 * b))
        e("v_mul_u32_u24 v5, 2731, v5")
        e("v_lshrrev_b32 v5, 16, v5")
        e("v_lshl_add_u32 v%d, v5, 2, v31" % (6 + b))
    e("s_waitcnt lgkmcnt(0)")
    for b in range(3):
        for a in range(0, 8, 2):
            e("ds_read2_b32 v[%d:%d], v%d offset0:%d offset1:%d" %
              (PR + b * 8 + a, PR + b * 8 + a + 1, 6 + b, K2_LP // 4 + a * 8, K2_LP // 4 + (a + 1) * 8))
    AR = 56
    for i in range(24):
        e("v_mov_b32 v%d, 0" % (AR + i))
    e("s_waitcnt lgkmcnt(0)")
    for n in range(24):
        a, b = n // 3, n % 3
        r = VR + n * 4
        e("s_waitcnt vmcnt(%d)" % (23 - n))
        for d in range(4):
            e("v_lshlrev_b32 v3, 16, v%d" % (r + d))
            e("v_and_b32 v4, 0xffff0000, v%d" % (r + d))
            e("v_fmac_f32 v%d, v3, v%d" % (AR + b * 8 + 2 * d, PR + b * 8 + a))
            e("v_fmac_f32 v%d, v4, v%d" % (AR + b * 8 + 2 * d + 1, PR + b * 8 + a))
    e("v_mul_u32_u24 v5, %d, v2" % (3 * 72 * 32))
    e("v_lshl_add_u32 v5, v1, 5, v5")
    for b in range(3):
        e("ds_write_b128 v5, v[%d:%d] offset:%d" % (AR + b * 8, AR + b * 8 + 3, K2_LA + b * 72 * 32))
        e("ds_write_b128 v5, v[%d:%d] offset:%d" % (AR + b * 8 + 4, AR + b * 8 + 7, K2_LA + b * 72 * 32 + 16))
    e("s_waitcnt lgkmcnt(0)")
    e("s_barrier")
    e("s_cmp_ge_u32 s24, 3")
    e("s_cbranch_scc1 K2_END")
    e("v_mov_b32 v5, 0")
    e("ds_read_b128 v[32:35], v5 offset:%d" % K2_LM)
    e("ds_read_b128 v[36:39], v5 offset:%d" % (K2_LM + 16))
    e("v_lshrrev_b32 v6, 3, v0")
    e("v_and_b32 v7, 7, v0")
    for b in range(3):
        e("v_add_u32 v8, %d, v6" % (8 * b))
        e("v_subrev_u32 v9, 24, v8")
        e("v_cmp_le_u32 vcc, 24, v8")
        e("s_nop 1")
        e("v_cndmask_b32 v8, v8, v9, vcc")
        e("v_lshlrev_b32 v8, 5, v8")
        e("v_lshl_add_u32 v%d, v7, 2, v8" % (10 + b))
    RR = 40
    for w in range(4):
        for b in range(3):
            for k in range(3):
                e("ds_read_b32 v%d, v%d offset:%d" % (RR + (w * 3 + b) * 3 + k, 10 + b,
                                                    K2_LA + (w * 3 + b) * 72 * 32 + k * 24 * 32))
    e("s_waitcnt lgkmcnt(0)")
    e("v_max3_f32 v3, v32, v34, v36")
    e("v_max_f32 v3, v3, v38")
    e("v_mov_b32 v4, 0")
    e("v_mov_b32 v5, 0")
    for w in range(4):
        e("v_sub_f32 v6, v%d, v3" % (32 + 2 * w))
        e("v_mul_f32 v6, s36, v6")
        e("v_exp_f32 v6, v6")
        e("s_nop 0")
        e("v_fmac_f32 v5, v6, v%d" % (33 + 2 * w))
        e("v_mov_b32 v7, v%d" % (RR + w * 9))
        for k in range(1, 9):
            e("v_add_f32 v7, v7, v%d" % (RR + w * 9 + k))
        e("v_fmac_f32 v4, v6, v7")
    e("s_lshl_b32 s27, s2, 10")
    e("s_add_u32 s27, s27, %d" % WS_P)
    e("v_lshlrev_b32 v6, 2, v0")
    e("buffer_store_dword v4, v6, s[20:23], s27 offen")
    e("v_cmp_eq_u32 vcc, 0, v0")
    e("s_and_saveexec_b64 s[40:41], vcc")
    e("s_cbranch_execz K2_END")
    e("v_mov_b32 v8, v3")
    e("v_mov_b32 v9, v5")
    e("buffer_store_dwordx2 v[8:9], v6, s[20:23], s27 offen offset:768")
    e("K2_END:")
    e("s_endpgm")

K3_WG = 320
def gen_k3():
    kernel_begin("k3_oproj_kernel")
    e("s_cmp_ge_u32 s2, %d" % K3_WG)
    e("s_cbranch_scc1 K3_END")
    e("s_load_dwordx2 s[4:5], s[0:1], 32")
    e("s_load_dwordx2 s[8:9], s[0:1], 96")
    e("s_waitcnt lgkmcnt(0)")
    srd(12, 4, 5, 6144 * 640 * 2)
    srd(20, 8, 9, WS_BYTES)
    e("s_mul_hi_u32 s25, s2, 0x1999999a")
    e("s_mul_i32 s26, s25, 10")
    e("s_sub_u32 s26, s2, s26")
    e("v_lshrrev_b32 v4, 3, v0")
    e("v_mul_u32_u24 v4, 1280, v4")
    e("v_and_b32 v5, 7, v0")
    e("v_lshl_add_u32 v4, v5, 4, v4")
    e("s_mul_i32 s27, s25, %d" % (192 * 1280))
    e("s_lshl_b32 s28, s26, 7")
    e("s_add_u32 s27, s27, s28")
    for i in range(6):
        e("buffer_load_dwordx4 v[%d:%d], v4, s[12:15], s27 offen" % (40 + 4 * i, 43 + 4 * i))
        if i < 5:
            e("s_add_u32 s27, s27, %d" % (32 * 1280))
    e("s_lshl_b32 s27, s25, 14")
    e("s_add_u32 s27, s27, %d" % WS_P)
    e("v_lshlrev_b32 v6, 2, v0")
    e("v_mov_b32 v7, 768")
    for s in range(NSPLIT):
        e("buffer_load_dword v%d, v6, s[20:23], s27 offen offset:%d" % (64 + s, (s % 4) * 1024))
        e("buffer_load_dwordx2 v[%d:%d], v7, s[20:23], s27 offen offset:%d" % (80 + 2 * s, 81 + 2 * s, (s % 4) * 1024))
        if s % 4 == 3 and s < NSPLIT - 1:
            e("s_add_u32 s27, s27, 4096")
    e("s_mov_b32 s36, 0x3dd53b95")
    e("s_waitcnt vmcnt(0)")
    e("v_mov_b32 v3, v80")
    for s in range(1, NSPLIT):
        e("v_max_f32 v3, v3, v%d" % (80 + 2 * s))
    e("v_mov_b32 v8, 0")
    e("v_mov_b32 v9, 0")
    for s in range(NSPLIT):
        e("v_sub_f32 v10, v%d, v3" % (80 + 2 * s))
        e("v_mul_f32 v10, s36, v10")
        e("v_exp_f32 v10, v10")
        e("s_nop 0")
        e("v_fmac_f32 v8, v10, v%d" % (64 + s))
        e("v_fmac_f32 v9, v10, v%d" % (81 + 2 * s))
    e("v_rcp_f32 v9, v9")
    e("s_nop 0")
    e("v_mul_f32 v8, v8, v9")
    rbf(8, 10)
    e("ds_write_b32 v6, v8")
    e("s_waitcnt lgkmcnt(0)")
    e("s_barrier")
    e("v_lshrrev_b32 v8, 3, v0")
    e("v_lshlrev_b32 v8, 2, v8")
    for i in range(6):
        e("ds_read_b32 v%d, v8 offset:%d" % (64 + i, i * 128))
    for c in range(8):
        e("v_mov_b32 v%d, 0" % (70 + c))
    e("s_waitcnt lgkmcnt(0)")
    for i in range(6):
        for d in range(4):
            e("v_lshlrev_b32 v9, 16, v%d" % (40 + 4 * i + d))
            e("v_fmac_f32 v%d, v9, v%d" % (70 + 2 * d, 64 + i))
            e("v_and_b32 v9, 0xffff0000, v%d" % (40 + 4 * i + d))
            e("v_fmac_f32 v%d, v9, v%d" % (71 + 2 * d, 64 + i))
    e("v_lshlrev_b32 v9, 5, v0")
    e("ds_write_b128 v9, v[70:73] offset:1024")
    e("ds_write_b128 v9, v[74:77] offset:1040")
    e("s_waitcnt lgkmcnt(0)")
    e("s_barrier")
    e("v_cmp_gt_u32 vcc, 64, v0")
    e("s_and_saveexec_b64 s[44:45], vcc")
    e("s_cbranch_execz K3_END")
    e("v_lshrrev_b32 v9, 3, v0")
    e("v_lshlrev_b32 v9, 5, v9")
    e("v_and_b32 v10, 7, v0")
    e("v_lshl_add_u32 v9, v10, 2, v9")
    for r in range(32):
        e("ds_read_b32 v%d, v9 offset:%d" % (80 + r, 1024 + r * 256))
    e("s_waitcnt lgkmcnt(0)")
    for r in range(1, 32):
        e("v_add_f32 v80, v80, v%d" % (80 + r))
    e("s_mul_i32 s27, s25, 2560")
    e("s_lshl_b32 s28, s26, 8")
    e("s_add_u32 s27, s27, s28")
    e("s_add_u32 s27, s27, %d" % WS_O)
    e("v_lshlrev_b32 v9, 2, v0")
    e("buffer_store_dword v80, v9, s[20:23], s27 offen")
    e("K3_END:")
    e("s_endpgm")

def gen_k4():
    kernel_begin("k4_final_kernel")
    e("s_cmp_ge_u32 s2, 3")
    e("s_cbranch_scc1 K4_END")
    e("s_load_dwordx2 s[4:5], s[0:1], 0")
    e("s_load_dwordx2 s[6:7], s[0:1], 80")
    e("s_load_dwordx2 s[8:9], s[0:1], 96")
    e("s_waitcnt lgkmcnt(0)")
    srd(12, 4, 5, 1280)
    srd(16, 6, 7, 1280)
    srd(20, 8, 9, WS_BYTES)
    e("s_lshl_b32 s3, s2, 8")
    e("v_add_u32 v1, s3, v0")
    e("v_cmp_gt_u32 vcc, 640, v1")
    e("s_and_saveexec_b64 s[44:45], vcc")
    e("s_cbranch_execz K4_END")
    e("v_lshlrev_b32 v2, 2, v1")
    e("v_lshlrev_b32 v3, 1, v1")
    e("s_mov_b32 s27, %d" % WS_O)
    for h in range(32):
        e("buffer_load_dword v%d, v2, s[20:23], s27 offen" % (10 + h))
        e("s_add_u32 s27, s27, 2560")
    e("s_mov_b32 s27, %d" % WS_G)
    e("buffer_load_dword v4, v2, s[20:23], s27 offen")
    e("buffer_load_ushort v5, v3, s[12:15], 0 offen")
    e("s_waitcnt vmcnt(0)")
    for h in range(1, 32):
        e("v_add_f32 v10, v10, v%d" % (10 + h))
    rbf(10, 6)
    e("v_mul_f32 v10, v10, v4")
    rbf(10, 6)
    e("v_lshlrev_b32 v5, 16, v5")
    e("v_add_f32 v10, v10, v5")
    e("v_cvt_pk_bf16_f32 v10, v10, v10")
    e("buffer_store_short v10, v3, s[16:19], 0 offen")
    e("K4_END:")
    e("s_endpgm")

import struct, math
def fhex(x):
    return "0x%08x" % struct.unpack("<I", struct.pack("<f", x))[0]

e(HEADER.rstrip())
e("; @launch kernel=k1_qproj_kernel grid=(%d,1,1) block=(256,1,1) lds=%d" % (K1_WG, 10240 + 8192))
e("; @launch kernel=k2_attn_kernel grid=(%d,1,1) block=(256,1,1) lds=%d" % (K2_WG, K2_LDS))
e("; @launch kernel=k3_oproj_kernel grid=(%d,1,1) block=(256,1,1) lds=%d" % (K3_WG, 1024 + 8192))
e("; @launch kernel=k4_final_kernel grid=(3,1,1) block=(256,1,1) lds=0")
e('.amdgcn_target "amdgcn-amd-amdhsa--gfx950"')
e(".text")
gen_k1()
gen_k2()
gen_k3()
gen_k4()
e('.section .rodata,"a"')
e(".p2align 6")
descriptor("k1_qproj_kernel", 112)
e(".p2align 6")
descriptor("k2_attn_kernel", 248)
e(".p2align 6")
descriptor("k3_oproj_kernel", 112)
e(".p2align 6")
descriptor("k4_final_kernel", 48)
txt = "\n".join(L) + "\n"
c = math.log2(math.e) / math.sqrt(192.0)
txt = txt.replace("0x3dd53b95", fhex(c))
txt = txt.replace("0xc0135761", fhex(-2.0 * math.sqrt(2.0 / math.pi) * math.log2(math.e)))
open(OUT, "w").write(txt)
print("c =", c, fhex(c))
```

```python
import sys

NAME = "recurrent_scan__sliding_block_cached__mixer_token_mlp__decode"
OUT = "cdna_kernels/%s.s" % NAME

HEADER = open("cdna_kernels/%s.s.ref" % NAME).read().split("; Override launch")[0]

WS_Q = 0
WS_G = 0x20000
WS_P = 0x40000
WS_O = 0x100000
WS_BYTES = 0x200000

NSPLIT = 16
KSPLIT = 4

L = []
def e(s=""):
    L.append(s)

def kernel_begin(name):
    e(".globl %s" % name)
    e(".p2align 8")
    e(".type %s,@function" % name)
    e("%s:" % name)

def srd(d, lo, hi, nbytes):
    e("s_mov_b32 s%d, s%d" % (d, lo))
    e("s_and_b32 s%d, s%d, 0xffff" % (d + 1, hi))
    e("s_mov_b32 s%d, 0x%x" % (d + 2, nbytes))
    e("s_mov_b32 s%d, 0x00020000" % (d + 3))

def wave_sum(v, tmp_s):
    e("s_nop 1")
    e("v_add_f32_dpp v%d, v%d, v%d quad_perm:[1,0,3,2] row_mask:0xf bank_mask:0xf" % (v, v, v))
    e("s_nop 1")
    e("v_add_f32_dpp v%d, v%d, v%d quad_perm:[2,3,0,1] row_mask:0xf bank_mask:0xf" % (v, v, v))
    e("s_nop 1")
    e("v_add_f32_dpp v%d, v%d, v%d row_half_mirror row_mask:0xf bank_mask:0xf" % (v, v, v))
    e("s_nop 1")
    e("v_add_f32_dpp v%d, v%d, v%d row_mirror row_mask:0xf bank_mask:0xf" % (v, v, v))
    e("s_nop 1")
    e("v_add_f32_dpp v%d, v%d, v%d row_bcast:15 row_mask:0xa bank_mask:0xf" % (v, v, v))
    e("s_nop 1")
    e("v_add_f32_dpp v%d, v%d, v%d row_bcast:31 row_mask:0xc bank_mask:0xf" % (v, v, v))
    e("s_nop 1")
    e("v_readlane_b32 s%d, v%d, 63" % (tmp_s, v))
    e("s_nop 3")

def rbf(v, tmp):
    e("v_cvt_pk_bf16_f32 v%d, v%d, v%d" % (tmp, v, v))
    e("v_lshlrev_b32 v%d, 16, v%d" % (v, tmp))

def layernorm(xv, n, t0, s0):
    e("v_mov_b32 v%d, v%d" % (t0, xv))
    for i in range(1, n):
        e("v_add_f32 v%d, v%d, v%d" % (t0, t0, xv + i))
    wave_sum(t0, s0)
    e("v_mov_b32 v%d, s%d" % (t0, s0))
    e("v_mul_f32 v%d, 0x3acccccd, v%d" % (t0, t0))
    e("v_mov_b32 v%d, 0" % (t0 + 1))
    for i in range(n):
        e("v_sub_f32 v%d, v%d, v%d" % (t0 + 2, xv + i, t0))
        e("v_fmac_f32 v%d, v%d, v%d" % (t0 + 1, t0 + 2, t0 + 2))
    wave_sum(t0 + 1, s0 + 1)
    e("v_mov_b32 v%d, s%d" % (t0 + 1, s0 + 1))
    e("v_mul_f32 v%d, 0x3acccccd, v%d" % (t0 + 1, t0 + 1))
    rbf(t0 + 1, t0 + 2)
    e("v_add_f32 v%d, 0x3727c5ac, v%d" % (t0 + 1, t0 + 1))
    rbf(t0 + 1, t0 + 2)
    e("v_sqrt_f32 v%d, v%d" % (t0 + 1, t0 + 1))
    e("s_nop 0")
    rbf(t0 + 1, t0 + 2)
    e("v_rcp_f32 v%d, v%d" % (t0 + 1, t0 + 1))
    e("s_nop 0")
    rbf(t0, t0 + 2)
    for i in range(n):
        e("v_sub_f32 v%d, v%d, v%d" % (xv + i, xv + i, t0))
        rbf(xv + i, t0 + 2)
        e("v_mul_f32 v%d, v%d, v%d" % (xv + i, xv + i, t0 + 1))
        rbf(xv + i, t0 + 2)

def descriptor(name, vgpr, sgpr=102):
    acc = (vgpr + 3) // 4 * 4
    e(".amdhsa_kernel %s" % name)
    e("  .amdhsa_next_free_vgpr %d" % vgpr)
    e("  .amdhsa_next_free_sgpr %d" % sgpr)
    e("  .amdhsa_accum_offset %d" % acc)
    e("  .amdhsa_group_segment_fixed_size 0")
    e("  .amdhsa_kernarg_size 104")
    e("  .amdhsa_user_sgpr_count 2")
    e("  .amdhsa_user_sgpr_kernarg_segment_ptr 1")
    e("  .amdhsa_system_sgpr_workgroup_id_x 1")
    e(".end_amdhsa_kernel")

K1_QWG = 96 * KSPLIT
K1_GWG = 160
K1_WG = K1_QWG + K1_GWG

def gen_k1():
    kernel_begin("k1_qproj_kernel")
    e("s_cmp_ge_u32 s2, %d" % K1_WG)
    e("s_cbranch_scc1 K1_END")
    e("s_load_dwordx2 s[4:5], s[0:1], 0")
    e("s_load_dwordx2 s[6:7], s[0:1], 24")
    e("s_load_dwordx2 s[8:9], s[0:1], 96")
    e("s_load_dwordx8 s[12:19], s[0:1], 48")
    e("s_waitcnt lgkmcnt(0)")
    srd(20, 4, 5, 1280)
    srd(24, 6, 7, 640 * 6144 * 2)
    srd(28, 8, 9, WS_BYTES)
    e("v_and_b32 v1, 63, v0")
    e("v_lshrrev_b32 v2, 6, v0")
    e("v_lshlrev_b32 v3, 2, v1")
    for i in range(5):
        e("buffer_load_dword v%d, v3, s[20:23], 0 offen offset:%d" % (10 + i, i * 256))
    e("s_cmp_ge_u32 s2, %d" % K1_QWG)
    e("s_cbranch_scc1 K1_NOW")
    e("s_mul_hi_u32 s33, s2, 0x2aaaaab")
    e("s_mul_i32 s34, s33, 96")
    e("s_sub_u32 s34, s2, s34")
    e("v_lshrrev_b32 v4, 3, v0")
    e("v_mul_u32_u24 v4, 12288, v4")
    e("v_and_b32 v5, 7, v0")
    e("v_lshl_add_u32 v4, v5, 4, v4")
    e("s_mul_i32 s35, s33, %d" % (160 * 12288))
    e("s_lshl_b32 s36, s34, 7")
    e("s_add_u32 s35, s35, s36")
    for i in range(5):
        e("buffer_load_dwordx4 v[%d:%d], v4, s[24:27], s35 offen nt" % (40 + 4 * i, 43 + 4 * i))
        if i < 4:
            e("s_add_u32 s35, s35, %d" % (32 * 12288))
    e("K1_NOW:")
    e("s_waitcnt vmcnt(5)")
    e("s_cmp_ge_u32 s2, %d" % K1_QWG)
    e("s_cbranch_scc0 K1_LN")
    e("s_waitcnt vmcnt(0)")
    e("K1_LN:")
    for i in range(5):
        e("v_lshlrev_b32 v%d, 16, v%d" % (20 + 2 * i, 10 + i))
        e("v_and_b32 v%d, 0xffff0000, v%d" % (21 + 2 * i, 10 + i))
    layernorm(20, 10, 30, 40)
    e("v_mul_u32_u24 v6, 2560, v2")
    e("v_lshl_add_u32 v7, v1, 3, v6")
    e("s_cmp_ge_u32 s2, %d" % K1_QWG)
    e("s_cbranch_scc1 K1_GATE")
    for i in range(5):
        e("ds_write_b64 v7, v[%d:%d] offset:%d" % (20 + 2 * i, 21 + 2 * i, i * 512))
    e("s_mul_i32 s36, s33, 640")
    e("v_lshrrev_b32 v8, 3, v0")
    e("v_lshl_add_u32 v8, v8, 2, v6")
    e("v_add_u32 v8, s36, v8")
    e("s_waitcnt lgkmcnt(0)")
    for i in range(5):
        e("ds_read_b32 v%d, v8 offset:%d" % (60 + i, i * 128))
    for c in range(8):
        e("v_mov_b32 v%d, 0" % (70 + c))
    e("s_waitcnt vmcnt(0) lgkmcnt(0)")
    for i in range(5):
        for d in range(4):
            e("v_lshlrev_b32 v9, 16, v%d" % (40 + 4 * i + d))
            e("v_fmac_f32 v%d, v9, v%d" % (70 + 2 * d, 60 + i))
            e("v_and_b32 v9, 0xffff0000, v%d" % (40 + 4 * i + d))
            e("v_fmac_f32 v%d, v9, v%d" % (71 + 2 * d, 60 + i))
    e("v_lshlrev_b32 v9, 5, v0")
    e("ds_write_b128 v9, v[70:73] offset:10240")
    e("ds_write_b128 v9, v[74:77] offset:10256")
    e("s_waitcnt lgkmcnt(0)")
    e("s_barrier")
    e("v_cmp_gt_u32 vcc, 64, v0")
    e("s_and_saveexec_b64 s[44:45], vcc")
    e("s_cbranch_execz K1_END")
    e("v_lshrrev_b32 v9, 3, v0")
    e("v_lshlrev_b32 v9, 5, v9")
    e("v_and_b32 v10, 7, v0")
    e("v_lshl_add_u32 v9, v10, 2, v9")
    for r in range(32):
        e("ds_read_b32 v%d, v9 offset:%d" % (80 + r, 10240 + r * 256))
    e("s_waitcnt lgkmcnt(0)")
    for r in range(1, 32):
        e("v_add_f32 v80, v80, v%d" % (80 + r))
    e("s_mul_i32 s36, s33, %d" % (6144 * 4))
    e("s_lshl_b32 s37, s34, 8")
    e("s_add_u32 s36, s36, s37")
    e("s_add_u32 s36, s36, %d" % WS_Q)
    e("v_lshlrev_b32 v9, 2, v0")
    e("buffer_store_dword v80, v9, s[28:31], s36 offen")
    e("s_branch K1_END")
    e("K1_GATE:")
    layernorm(20, 10, 30, 40)
    for i in range(5):
        e("ds_write_b64 v7, v[%d:%d] offset:%d" % (20 + 2 * i, 21 + 2 * i, i * 512))
    srd(48, 12, 13, 3072)
    srd(52, 14, 15, 3072)
    srd(56, 16, 17, 3072)
    srd(60, 18, 19, 2)
    e("v_lshlrev_b32 v8, 4, v1")
    for j in range(3):
        e("buffer_load_dwordx4 v[%d:%d], v8, s[48:51], 0 offen offset:%d" % (40 + 4 * j, 43 + 4 * j, j * 1024))
        e("buffer_load_dwordx4 v[%d:%d], v8, s[52:55], 0 offen offset:%d" % (52 + 4 * j, 55 + 4 * j, j * 1024))
        e("buffer_load_dwordx4 v[%d:%d], v8, s[56:59], 0 offen offset:%d" % (64 + 4 * j, 67 + 4 * j, j * 1024))
    e("v_mov_b32 v9, 0")
    e("buffer_load_ushort v76, v9, s[60:63], 0 offen")
    e("s_sub_u32 s33, s2, %d" % K1_QWG)
    e("s_lshl_b32 s33, s33, 2")
    e("v_add_u32 v9, s33, v2")
    e("v_lshl_add_u32 v10, v9, 2, v6")
    e("s_waitcnt lgkmcnt(0)")
    e("ds_read_b32 v11, v10")
    e("v_mov_b32 v12, 0")
    e("s_mov_b32 s34, 0x3d372713")
    e("s_mov_b32 s35, 0xc0135761")
    e("s_waitcnt vmcnt(0) lgkmcnt(0)")
    for j in range(3):
        for d in range(4):
            for half in range(2):
                op = "v_lshlrev_b32 v%d, 16, v%d" if half == 0 else "v_and_b32 v%d, 0xffff0000, v%d"
                e(op % (13, 40 + 4 * j + d))
                e(op % (14, 52 + 4 * j + d))
                e(op % (15, 64 + 4 * j + d))
                e("v_mul_f32 v13, v13, v11")
                rbf(13, 16)
                e("v_add_f32 v13, v13, v14")
                rbf(13, 16)
                e("v_mul_f32 v16, v13, v13")
                e("v_mul_f32 v16, s34, v16")
                e("v_fma_f32 v16, v16, v13, v13")
                e("v_mul_f32 v16, s35, v16")
                e("v_exp_f32 v16, v16")
                e("s_nop 0")
                e("v_add_f32 v16, 1.0, v16")
                e("v_rcp_f32 v16, v16")
                e("s_nop 0")
                e("v_mul_f32 v13, v13, v16")
                rbf(13, 16)
                e("v_fmac_f32 v12, v13, v15")
    wave_sum(12, 36)
    e("v_mov_b32 v12, s36")
    rbf(12, 16)
    e("v_lshlrev_b32 v76, 16, v76")
    e("v_add_f32 v12, v12, v76")
    rbf(12, 16)
    e("v_mul_f32 v13, 0xbfb8aa3b, v12")
    e("v_exp_f32 v13, v13")
    e("s_nop 0")
    e("v_add_f32 v13, 1.0, v13")
    e("v_rcp_f32 v13, v13")
    e("s_nop 0")
    e("v_mul_f32 v12, v12, v13")
    rbf(12, 16)
    e("v_cmp_eq_u32 vcc, 0, v1")
    e("s_and_saveexec_b64 s[44:45], vcc")
    e("s_cbranch_execz K1_END")
    e("v_lshlrev_b32 v9, 2, v9")
    e("s_mov_b32 s36, %d" % WS_G)
    e("buffer_store_dword v12, v9, s[28:31], s36 offen")
    e("K1_END:")
    e("s_endpgm")

K2_WG = 32 * NSPLIT
HEAD_STRIDE = 32768 * 384
KV_BYTES = 32 * HEAD_STRIDE
WIN0 = (32768 - 4096)
K2_LQ = 0
K2_LP = 512
K2_LM = 1536
K2_LA = 2048
K2_LDS = K2_LA + 12 * 72 * 32

def gen_k2():
    kernel_begin("k2_attn_kernel")
    e("s_cmp_ge_u32 s2, %d" % K2_WG)
    e("s_cbranch_scc1 K2_END")
    e("s_load_dwordx4 s[4:7], s[0:1], 8")
    e("s_load_dwordx2 s[8:9], s[0:1], 96")
    e("s_waitcnt lgkmcnt(0)")
    srd(12, 4, 5, KV_BYTES)
    srd(16, 6, 7, KV_BYTES)
    srd(20, 8, 9, WS_BYTES)
    e("v_and_b32 v1, 63, v0")
    e("v_lshrrev_b32 v2, 6, v0")
    e("s_nop 0")
    e("v_readfirstlane_b32 s24, v2")
    e("s_lshr_b32 s25, s2, 4")
    e("s_and_b32 s26, s2, 15")
    e("v_lshlrev_b32 v3, 2, v0")
    e("s_mul_i32 s27, s25, 768")
    e("s_add_u32 s27, s27, %d" % WS_Q)
    for ks in range(KSPLIT):
        e("buffer_load_dword v%d, v3, s[20:23], s27 offen" % (4 + ks))
        if ks < KSPLIT - 1:
            e("s_add_u32 s27, s27, %d" % (6144 * 4))
    e("s_mul_i32 s28, s25, %d" % HEAD_STRIDE)
    e("s_lshl_b32 s29, s26, 8")
    e("s_lshl_b32 s30, s24, 6")
    e("s_add_u32 s29, s29, s30")
    e("s_add_u32 s29, s29, %d" % WIN0)
    e("s_mul_i32 s29, s29, 384")
    e("s_add_u32 s28, s28, s29")
    e("v_and_b32 v8, 15, v1")
    e("v_mul_u32_u24 v8, 384, v8")
    e("v_lshrrev_b32 v9, 4, v1")
    e("v_lshl_add_u32 v8, v9, 4, v8")
    e("s_mov_b32 s29, s28")
    KR = 32
    VR = 128
    for T in range(4):
        for t in range(6):
            r = KR + (T * 6 + t) * 4
            e("buffer_load_dwordx4 v[%d:%d], v8, s[12:15], s29 offen offset:%d nt" % (r, r + 3, t * 64))
        if T < 3:
            e("s_add_u32 s29, s29, 6144")
    e("v_lshlrev_b32 v10, 4, v1")
    e("s_mov_b32 s29, s28")
    for n in range(24):
        r = VR + n * 4
        e("buffer_load_dwordx4 v[%d:%d], v10, s[16:19], s29 offen offset:%d nt" % (r, r + 3, (n % 4) * 1024))
        if n % 4 == 3 and n < 23:
            e("s_add_u32 s29, s29, 4096")
    e("v_lshrrev_b32 v11, 3, v0")
    e("v_mul_u32_u24 v11, %d, v11" % (72 * 32))
    e("v_and_b32 v12, 7, v0")
    e("v_lshl_add_u32 v11, v12, 5, v11")
    e("v_mov_b32 v12, 0")
    e("v_mov_b32 v13, 0")
    e("v_mov_b32 v14, 0")
    e("v_mov_b32 v15, 0")
    e("v_cmp_gt_u32 vcc, 96, v0")
    e("s_and_saveexec_b64 s[40:41], vcc")
    e("ds_write_b128 v11, v[12:15] offset:%d" % (K2_LA + 64 * 32))
    e("ds_write_b128 v11, v[12:15] offset:%d" % (K2_LA + 64 * 32 + 16))
    e("s_mov_b64 exec, s[40:41]")
    e("s_waitcnt vmcnt(48)")
    e("v_add_f32 v4, v4, v5")
    e("v_add_f32 v6, v6, v7")
    e("v_add_f32 v4, v4, v6")
    e("v_cvt_pk_bf16_f32 v4, v4, v4")
    e("v_lshlrev_b32 v5, 1, v0")
    e("v_cmp_gt_u32 vcc, 192, v0")
    e("s_and_saveexec_b64 s[40:41], vcc")
    e("ds_write_b16 v5, v4 offset:%d" % K2_LQ)
    e("s_mov_b64 exec, s[40:41]")
    e("s_waitcnt lgkmcnt(0)")
    e("s_barrier")
    QR = 224
    e("v_lshlrev_b32 v5, 4, v9")
    for t in range(6):
        e("ds_read_b128 v[%d:%d], v5 offset:%d" % (QR + 4 * t, QR + 4 * t + 3, K2_LQ + t * 64))
    SR = 12
    for i in range(16):
        e("v_mov_b32 v%d, 0" % (SR + i))
    e("s_waitcnt lgkmcnt(0)")
    for T in range(4):
        for t in range(6):
            r = KR + (T * 6 + t) * 4
            e("s_waitcnt vmcnt(%d)" % (47 - (T * 6 + t)))
            e("v_mfma_f32_16x16x32_bf16 v[%d:%d], v[%d:%d], v[%d:%d], v[%d:%d]" %
              (SR + 4 * T, SR + 4 * T + 3, r, r + 3, QR + 4 * t, QR + 4 * t + 3, SR + 4 * T, SR + 4 * T + 3))
    e("s_nop 7")
    e("s_nop 1")
    e("v_max3_f32 v28, v12, v13, v14")
    for i in range(3, 16, 2):
        if i + 1 < 16:
            e("v_max3_f32 v28, v28, v%d, v%d" % (SR + i, SR + i + 1))
        else:
            e("v_max_f32 v28, v28, v%d" % (SR + i))
    e("s_nop 1")
    e("v_readlane_b32 s32, v28, 0")
    e("v_readlane_b32 s33, v28, 16")
    e("v_readlane_b32 s34, v28, 32")
    e("v_readlane_b32 s35, v28, 48")
    e("s_nop 3")
    e("v_mov_b32 v28, s32")
    e("v_max_f32 v28, s33, v28")
    e("v_max_f32 v28, s34, v28")
    e("v_max_f32 v28, s35, v28")
    e("s_mov_b32 s36, 0x3dd53b95")
    e("v_mul_f32 v29, s36, v28")
    e("v_mov_b32 v30, 0")
    for i in range(16):
        e("v_fma_f32 v%d, v%d, s36, -v29" % (SR + i, SR + i))
        e("v_exp_f32 v%d, v%d" % (SR + i, SR + i))
        e("s_nop 0")
        e("v_add_f32 v30, v30, v%d" % (SR + i))
    e("s_nop 1")
    e("v_readlane_b32 s32, v30, 0")
    e("v_readlane_b32 s33, v30, 16")
    e("v_readlane_b32 s34, v30, 32")
    e("v_readlane_b32 s35, v30, 48")
    e("s_nop 3")
    e("v_mov_b32 v30, s32")
    e("v_add_f32 v30, s33, v30")
    e("v_add_f32 v30, s34, v30")
    e("v_add_f32 v30, s35, v30")
    e("v_lshlrev_b32 v31, 8, v2")
    e("v_lshl_add_u32 v5, v9, 4, v31")
    for T in range(4):
        e("ds_write_b128 v5, v[%d:%d] offset:%d" % (SR + 4 * T, SR + 4 * T + 3, K2_LP + T * 64))
    e("v_mov_b32 v29, v30")
    e("v_lshlrev_b32 v5, 3, v2")
    e("ds_write_b64 v5, v[28:29] offset:%d" % K2_LM)
    PR = 32
    for b in range(3):
        e("v_add_u32 v5, %d, v1" % (64 * b))
        e("v_mul_u32_u24 v5, 2731, v5")
        e("v_lshrrev_b32 v5, 16, v5")
        e("v_lshl_add_u32 v%d, v5, 2, v31" % (6 + b))
    e("s_waitcnt lgkmcnt(0)")
    for b in range(3):
        for a in range(0, 8, 2):
            e("ds_read2_b32 v[%d:%d], v%d offset0:%d offset1:%d" %
              (PR + b * 8 + a, PR + b * 8 + a + 1, 6 + b, K2_LP // 4 + a * 8, K2_LP // 4 + (a + 1) * 8))
    AR = 56
    for i in range(24):
        e("v_mov_b32 v%d, 0" % (AR + i))
    e("s_waitcnt lgkmcnt(0)")
    for n in range(24):
        a, b = n // 3, n % 3
        r = VR + n * 4
        e("s_waitcnt vmcnt(%d)" % (23 - n))
        for d in range(4):
            e("v_lshlrev_b32 v3, 16, v%d" % (r + d))
            e("v_and_b32 v4, 0xffff0000, v%d" % (r + d))
            e("v_fmac_f32 v%d, v3, v%d" % (AR + b * 8 + 2 * d, PR + b * 8 + a))
            e("v_fmac_f32 v%d, v4, v%d" % (AR + b * 8 + 2 * d + 1, PR + b * 8 + a))
    e("v_mul_u32_u24 v5, %d, v2" % (3 * 72 * 32))
    e("v_lshl_add_u32 v5, v1, 5, v5")
    for b in range(3):
        e("ds_write_b128 v5, v[%d:%d] offset:%d" % (AR + b * 8, AR + b * 8 + 3, K2_LA + b * 72 * 32))
        e("ds_write_b128 v5, v[%d:%d] offset:%d" % (AR + b * 8 + 4, AR + b * 8 + 7, K2_LA + b * 72 * 32 + 16))
    e("s_waitcnt lgkmcnt(0)")
    e("s_barrier")
    e("s_cmp_ge_u32 s24, 3")
    e("s_cbranch_scc1 K2_END")
    e("v_mov_b32 v5, 0")
    e("ds_read_b128 v[32:35], v5 offset:%d" % K2_LM)
    e("ds_read_b128 v[36:39], v5 offset:%d" % (K2_LM + 16))
    e("v_lshrrev_b32 v6, 3, v0")
    e("v_and_b32 v7, 7, v0")
    for b in range(3):
        e("v_add_u32 v8, %d, v6" % (8 * b))
        e("v_subrev_u32 v9, 24, v8")
        e("v_cmp_le_u32 vcc, 24, v8")
        e("s_nop 1")
        e("v_cndmask_b32 v8, v8, v9, vcc")
        e("v_lshlrev_b32 v8, 5, v8")
        e("v_lshl_add_u32 v%d, v7, 2, v8" % (10 + b))
    RR = 40
    for w in range(4):
        for b in range(3):
            for k in range(3):
                e("ds_read_b32 v%d, v%d offset:%d" % (RR + (w * 3 + b) * 3 + k, 10 + b,
                                                    K2_LA + (w * 3 + b) * 72 * 32 + k * 24 * 32))
    e("s_waitcnt lgkmcnt(0)")
    e("v_max3_f32 v3, v32, v34, v36")
    e("v_max_f32 v3, v3, v38")
    e("v_mov_b32 v4, 0")
    e("v_mov_b32 v5, 0")
    for w in range(4):
        e("v_sub_f32 v6, v%d, v3" % (32 + 2 * w))
        e("v_mul_f32 v6, s36, v6")
        e("v_exp_f32 v6, v6")
        e("s_nop 0")
        e("v_fmac_f32 v5, v6, v%d" % (33 + 2 * w))
        e("v_mov_b32 v7, v%d" % (RR + w * 9))
        for k in range(1, 9):
            e("v_add_f32 v7, v7, v%d" % (RR + w * 9 + k))
        e("v_fmac_f32 v4, v6, v7")
    e("s_lshl_b32 s27, s2, 10")
    e("s_add_u32 s27, s27, %d" % WS_P)
    e("v_lshlrev_b32 v6, 2, v0")
    e("buffer_store_dword v4, v6, s[20:23], s27 offen")
    e("v_cmp_eq_u32 vcc, 0, v0")
    e("s_and_saveexec_b64 s[40:41], vcc")
    e("s_cbranch_execz K2_END")
    e("v_mov_b32 v8, v3")
    e("v_mov_b32 v9, v5")
    e("buffer_store_dwordx2 v[8:9], v6, s[20:23], s27 offen offset:768")
    e("K2_END:")
    e("s_endpgm")

K3_WG = 320
def gen_k3():
    kernel_begin("k3_oproj_kernel")
    e("s_cmp_ge_u32 s2, %d" % K3_WG)
    e("s_cbranch_scc1 K3_END")
    e("s_load_dwordx2 s[4:5], s[0:1], 32")
    e("s_load_dwordx2 s[8:9], s[0:1], 96")
    e("s_waitcnt lgkmcnt(0)")
    srd(12, 4, 5, 6144 * 640 * 2)
    srd(20, 8, 9, WS_BYTES)
    e("s_mul_hi_u32 s25, s2, 0x1999999a")
    e("s_mul_i32 s26, s25, 10")
    e("s_sub_u32 s26, s2, s26")
    e("v_lshrrev_b32 v4, 3, v0")
    e("v_mul_u32_u24 v4, 1280, v4")
    e("v_and_b32 v5, 7, v0")
    e("v_lshl_add_u32 v4, v5, 4, v4")
    e("s_mul_i32 s27, s25, %d" % (192 * 1280))
    e("s_lshl_b32 s28, s26, 7")
    e("s_add_u32 s27, s27, s28")
    for i in range(6):
        e("buffer_load_dwordx4 v[%d:%d], v4, s[12:15], s27 offen nt" % (40 + 4 * i, 43 + 4 * i))
        if i < 5:
            e("s_add_u32 s27, s27, %d" % (32 * 1280))
    e("s_lshl_b32 s27, s25, 14")
    e("s_add_u32 s27, s27, %d" % WS_P)
    e("v_lshlrev_b32 v6, 2, v0")
    e("v_mov_b32 v7, 768")
    for s in range(NSPLIT):
        e("buffer_load_dword v%d, v6, s[20:23], s27 offen offset:%d" % (64 + s, (s % 4) * 1024))
        e("buffer_load_dwordx2 v[%d:%d], v7, s[20:23], s27 offen offset:%d" % (80 + 2 * s, 81 + 2 * s, (s % 4) * 1024))
        if s % 4 == 3 and s < NSPLIT - 1:
            e("s_add_u32 s27, s27, 4096")
    e("s_mov_b32 s36, 0x3dd53b95")
    e("s_waitcnt vmcnt(0)")
    e("v_mov_b32 v3, v80")
    for s in range(1, NSPLIT):
        e("v_max_f32 v3, v3, v%d" % (80 + 2 * s))
    e("v_mov_b32 v8, 0")
    e("v_mov_b32 v9, 0")
    for s in range(NSPLIT):
        e("v_sub_f32 v10, v%d, v3" % (80 + 2 * s))
        e("v_mul_f32 v10, s36, v10")
        e("v_exp_f32 v10, v10")
        e("s_nop 0")
        e("v_fmac_f32 v8, v10, v%d" % (64 + s))
        e("v_fmac_f32 v9, v10, v%d" % (81 + 2 * s))
    e("v_rcp_f32 v9, v9")
    e("s_nop 0")
    e("v_mul_f32 v8, v8, v9")
    rbf(8, 10)
    e("ds_write_b32 v6, v8")
    e("s_waitcnt lgkmcnt(0)")
    e("s_barrier")
    e("v_lshrrev_b32 v8, 3, v0")
    e("v_lshlrev_b32 v8, 2, v8")
    for i in range(6):
        e("ds_read_b32 v%d, v8 offset:%d" % (64 + i, i * 128))
    for c in range(8):
        e("v_mov_b32 v%d, 0" % (70 + c))
    e("s_waitcnt lgkmcnt(0)")
    for i in range(6):
        for d in range(4):
            e("v_lshlrev_b32 v9, 16, v%d" % (40 + 4 * i + d))
            e("v_fmac_f32 v%d, v9, v%d" % (70 + 2 * d, 64 + i))
            e("v_and_b32 v9, 0xffff0000, v%d" % (40 + 4 * i + d))
            e("v_fmac_f32 v%d, v9, v%d" % (71 + 2 * d, 64 + i))
    e("v_lshlrev_b32 v9, 5, v0")
    e("ds_write_b128 v9, v[70:73] offset:1024")
    e("ds_write_b128 v9, v[74:77] offset:1040")
    e("s_waitcnt lgkmcnt(0)")
    e("s_barrier")
    e("v_cmp_gt_u32 vcc, 64, v0")
    e("s_and_saveexec_b64 s[44:45], vcc")
    e("s_cbranch_execz K3_END")
    e("v_lshrrev_b32 v9, 3, v0")
    e("v_lshlrev_b32 v9, 5, v9")
    e("v_and_b32 v10, 7, v0")
    e("v_lshl_add_u32 v9, v10, 2, v9")
    for r in range(32):
        e("ds_read_b32 v%d, v9 offset:%d" % (80 + r, 1024 + r * 256))
    e("s_waitcnt lgkmcnt(0)")
    for r in range(1, 32):
        e("v_add_f32 v80, v80, v%d" % (80 + r))
    e("s_mul_i32 s27, s25, 2560")
    e("s_lshl_b32 s28, s26, 8")
    e("s_add_u32 s27, s27, s28")
    e("s_add_u32 s27, s27, %d" % WS_O)
    e("v_lshlrev_b32 v9, 2, v0")
    e("buffer_store_dword v80, v9, s[20:23], s27 offen")
    e("K3_END:")
    e("s_endpgm")

def gen_k4():
    kernel_begin("k4_final_kernel")
    e("s_cmp_ge_u32 s2, 3")
    e("s_cbranch_scc1 K4_END")
    e("s_load_dwordx2 s[4:5], s[0:1], 0")
    e("s_load_dwordx2 s[6:7], s[0:1], 80")
    e("s_load_dwordx2 s[8:9], s[0:1], 96")
    e("s_waitcnt lgkmcnt(0)")
    srd(12, 4, 5, 1280)
    srd(16, 6, 7, 1280)
    srd(20, 8, 9, WS_BYTES)
    e("s_lshl_b32 s3, s2, 8")
    e("v_add_u32 v1, s3, v0")
    e("v_cmp_gt_u32 vcc, 640, v1")
    e("s_and_saveexec_b64 s[44:45], vcc")
    e("s_cbranch_execz K4_END")
    e("v_lshlrev_b32 v2, 2, v1")
    e("v_lshlrev_b32 v3, 1, v1")
    e("s_mov_b32 s27, %d" % WS_O)
    for h in range(32):
        e("buffer_load_dword v%d, v2, s[20:23], s27 offen" % (10 + h))
        e("s_add_u32 s27, s27, 2560")
    e("s_mov_b32 s27, %d" % WS_G)
    e("buffer_load_dword v4, v2, s[20:23], s27 offen")
    e("buffer_load_ushort v5, v3, s[12:15], 0 offen")
    e("s_waitcnt vmcnt(0)")
    for h in range(1, 32):
        e("v_add_f32 v10, v10, v%d" % (10 + h))
    rbf(10, 6)
    e("v_mul_f32 v10, v10, v4")
    rbf(10, 6)
    e("v_lshlrev_b32 v5, 16, v5")
    e("v_add_f32 v10, v10, v5")
    e("v_cvt_pk_bf16_f32 v10, v10, v10")
    e("buffer_store_short v10, v3, s[16:19], 0 offen")
    e("K4_END:")
    e("s_endpgm")

import struct, math
def fhex(x):
    return "0x%08x" % struct.unpack("<I", struct.pack("<f", x))[0]

e(HEADER.rstrip())
e("; @launch kernel=k1_qproj_kernel grid=(%d,1,1) block=(256,1,1) lds=%d" % (K1_WG, 10240 + 8192))
e("; @launch kernel=k2_attn_kernel grid=(%d,1,1) block=(256,1,1) lds=%d" % (K2_WG, K2_LDS))
e("; @launch kernel=k3_oproj_kernel grid=(%d,1,1) block=(256,1,1) lds=%d" % (K3_WG, 1024 + 8192))
e("; @launch kernel=k4_final_kernel grid=(3,1,1) block=(256,1,1) lds=0")
e('.amdgcn_target "amdgcn-amd-amdhsa--gfx950"')
e(".text")
gen_k1()
gen_k2()
gen_k3()
gen_k4()
e('.section .rodata,"a"')
e(".p2align 6")
descriptor("k1_qproj_kernel", 112)
e(".p2align 6")
descriptor("k2_attn_kernel", 248)
e(".p2align 6")
descriptor("k3_oproj_kernel", 112)
e(".p2align 6")
descriptor("k4_final_kernel", 48)
txt = "\n".join(L) + "\n"
c = math.log2(math.e) / math.sqrt(192.0)
txt = txt.replace("0x3dd53b95", fhex(c))
txt = txt.replace("0xc0135761", fhex(-2.0 * math.sqrt(2.0 / math.pi) * math.log2(math.e)))
open(OUT, "w").write(txt)
print("c =", c, fhex(c))
```

```python
import sys, struct, math, os
LATE = int(os.environ.get('LATE','0'))

NAME = "recurrent_scan__sliding_block_cached__mixer_token_mlp__decode"
OUT = sys.argv[1] if len(sys.argv) > 1 else "cdna_kernels/%s.s" % NAME
HEADER = open("cdna_kernels/%s.s.ref" % NAME).read().split("; Override launch")[0]

WS_QP = 0
WS_G = 0x40000
WS_P = 0x80000
WS_F = 0x100000
WS_T = 0x280000
WS_BYTES = 0x300000
NSPLIT = 8

L = []
import re
def e(s=""):
    if s.startswith("buffer_"):
        m = re.search(r"offset:(\d+)", s)
        assert not m or int(m.group(1)) < 4096, s
    L.append(s)
def fhex(x):
    return "0x%08x" % struct.unpack("<I", struct.pack("<f", x))[0]
C_SM = fhex(math.log2(math.e) / math.sqrt(192.0))
C_GELU = fhex(-2.0 * math.sqrt(2.0 / math.pi) * math.log2(math.e))

def kernel_begin(name):
    e(".globl %s" % name)
    e(".p2align 8")
    e(".type %s,@function" % name)
    e("%s:" % name)

def srd(d, lo, hi, nbytes):
    e("s_mov_b32 s%d, s%d" % (d, lo))
    e("s_and_b32 s%d, s%d, 0xffff" % (d + 1, hi))
    e("s_mov_b32 s%d, 0x%x" % (d + 2, nbytes))
    e("s_mov_b32 s%d, 0x00020000" % (d + 3))

def wave_sum(v, tmp_s):
    e("s_nop 1")
    e("v_add_f32_dpp v%d, v%d, v%d quad_perm:[1,0,3,2] row_mask:0xf bank_mask:0xf" % (v, v, v))
    e("s_nop 1")
    e("v_add_f32_dpp v%d, v%d, v%d quad_perm:[2,3,0,1] row_mask:0xf bank_mask:0xf" % (v, v, v))
    e("s_nop 1")
    e("v_add_f32_dpp v%d, v%d, v%d row_half_mirror row_mask:0xf bank_mask:0xf" % (v, v, v))
    e("s_nop 1")
    e("v_add_f32_dpp v%d, v%d, v%d row_mirror row_mask:0xf bank_mask:0xf" % (v, v, v))
    e("s_nop 1")
    e("v_add_f32_dpp v%d, v%d, v%d row_bcast:15 row_mask:0xa bank_mask:0xf" % (v, v, v))
    e("s_nop 1")
    e("v_add_f32_dpp v%d, v%d, v%d row_bcast:31 row_mask:0xc bank_mask:0xf" % (v, v, v))
    e("s_nop 1")
    e("v_readlane_b32 s%d, v%d, 63" % (tmp_s, v))
    e("s_nop 3")

def rbf(v, tmp):
    e("v_cvt_pk_bf16_f32 v%d, v%d, v%d" % (tmp, v, v))
    e("v_lshlrev_b32 v%d, 16, v%d" % (v, tmp))

def layernorm(xv, n, t0, s0):
    e("v_mov_b32 v%d, v%d" % (t0, xv))
    for i in range(1, n):
        e("v_add_f32 v%d, v%d, v%d" % (t0, t0, xv + i))
    wave_sum(t0, s0)
    e("v_mov_b32 v%d, s%d" % (t0, s0))
    e("v_mul_f32 v%d, 0x3acccccd, v%d" % (t0, t0))
    e("v_mov_b32 v%d, 0" % (t0 + 1))
    for i in range(n):
        e("v_sub_f32 v%d, v%d, v%d" % (t0 + 2, xv + i, t0))
        e("v_fmac_f32 v%d, v%d, v%d" % (t0 + 1, t0 + 2, t0 + 2))
    wave_sum(t0 + 1, s0 + 1)
    e("v_mov_b32 v%d, s%d" % (t0 + 1, s0 + 1))
    e("v_mul_f32 v%d, 0x3acccccd, v%d" % (t0 + 1, t0 + 1))
    rbf(t0 + 1, t0 + 2)
    e("v_add_f32 v%d, 0x3727c5ac, v%d" % (t0 + 1, t0 + 1))
    rbf(t0 + 1, t0 + 2)
    e("v_sqrt_f32 v%d, v%d" % (t0 + 1, t0 + 1))
    e("s_nop 0")
    rbf(t0 + 1, t0 + 2)
    e("v_rcp_f32 v%d, v%d" % (t0 + 1, t0 + 1))
    e("s_nop 0")
    rbf(t0, t0 + 2)
    for i in range(n):
        e("v_sub_f32 v%d, v%d, v%d" % (xv + i, xv + i, t0))
        rbf(xv + i, t0 + 2)
        e("v_mul_f32 v%d, v%d, v%d" % (xv + i, xv + i, t0 + 1))
        rbf(xv + i, t0 + 2)

def descriptor(name, vgpr, sgpr=102):
    acc = (vgpr + 3) // 4 * 4
    e(".p2align 6")
    e(".amdhsa_kernel %s" % name)
    e("  .amdhsa_next_free_vgpr %d" % vgpr)
    e("  .amdhsa_next_free_sgpr %d" % sgpr)
    e("  .amdhsa_accum_offset %d" % acc)
    e("  .amdhsa_group_segment_fixed_size 0")
    e("  .amdhsa_kernarg_size 104")
    e("  .amdhsa_user_sgpr_count 2")
    e("  .amdhsa_user_sgpr_kernarg_segment_ptr 1")
    e("  .amdhsa_system_sgpr_workgroup_id_x 1")
    e(".end_amdhsa_kernel")


A_WG = 256
HEAD_STRIDE = 32768 * 384
KV_BYTES = 32 * HEAD_STRIDE
WIN0 = (32768 - 4096)
NW = 8
LA = 0
LQ = LA + NW * 3 * 72 * 32
LM = LQ + 512
LN = LM + 64
LP = LN + 64
LO = LP + NW * 256
LX = LO + 1024
LW = LX + 8 * 2560
A_LDS = LW + 30720
LF = 0
LR = 16384
LQD = 32768

VR = 32
QR = 128
KR = 152
PR = 152
AR = 176
SRS = [20, 24, 28, 248]
POLL_LIMIT = 1 << 16
DEPTH = int(os.environ.get("DEPTH", "10"))
PREK = int(os.environ.get("PREK", "0"))
STAMP = int(os.environ.get("STAMP", "0"))

def stamp(i):
    if not STAMP: return
    e("s_memrealtime s[100:101]")
    e("s_waitcnt lgkmcnt(0)")
    e("v_mov_b32 v19, s100")
    e("s_lshl_b32 s62, s2, 9")
    e("s_lshl_b32 s63, s24, 6")
    e("s_add_u32 s62, s62, s63")
    e("s_add_u32 s62, s62, %d" % (WS_T + i * 4))
    e("buffer_store_dword v19, off, s[20:23], s62")

def reduce_dump(RR, scale_regs, dst):
    e("v_mov_b32 v%d, 0" % dst)
    def fin(w):
        pb = RR + (w % 2) * 9
        for k in range(1, 9):
            e("v_add_f32 v%d, v%d, v%d" % (pb, pb, pb + k))
        e("v_fmac_f32 v%d, v%d, v%d" % (dst, scale_regs + w, pb))
    for w in range(NW):
        base = RR + (w % 2) * 9
        for b in range(3):
            for k in range(3):
                e("ds_read_b32 v%d, v%d offset:%d" % (base + b * 3 + k, 10 + b,
                                                    LA + (w * 3 + b) * 72 * 32 + k * 24 * 32))
        if w > 0:
            e("s_waitcnt lgkmcnt(9)")
            fin(w - 1)
    e("s_waitcnt lgkmcnt(0)")
    fin(NW - 1)

def poll_begin(label):
    e("s_mov_b32 s60, 0")
    e("%s:" % label)

def poll_end(label):
    e("s_cbranch_vccz %s_D" % label)
    e("s_sleep 1")
    e("s_add_u32 s60, s60, 1")
    e("s_cmp_lt_u32 s60, %d" % POLL_LIMIT)
    e("s_cbranch_scc1 %s" % label)
    e("%s_D:" % label)

def k_load(i):
    T, t = i // 6, i % 6
    r = KR + i * 4
    if t == 0 and T > 0:
        e("s_add_u32 s29, s29, 6144")
    e("buffer_load_dwordx4 v[%d:%d], v8, s[12:15], s29 offen offset:%d nt" % (r, r + 3, t * 64))

def v_load(n):
    r = VR + n * 4
    if n % 4 == 0 and n > 0:
        e("s_add_u32 s30, s30, 4096")
    e("buffer_load_dwordx4 v[%d:%d], v6, s[16:19], s30 offen offset:%d nt" % (r, r + 3, (n % 4) * 1024))

def gen_main():
    kernel_begin(NAME + "_kernel")
    e("s_cmp_ge_u32 s2, %d" % A_WG)
    e("s_cbranch_scc1 K_END")
    e("s_load_dwordx8 s[4:11], s[0:1], 0")
    e("s_load_dwordx2 s[74:75], s[0:1], 32")
    e("s_load_dwordx8 s[64:71], s[0:1], 48")
    e("s_load_dwordx4 s[76:79], s[0:1], 80")
    e("s_load_dwordx2 s[72:73], s[0:1], 96")
    e("s_memrealtime s[98:99]")
    e("v_and_b32 v1, 63, v0")
    e("v_lshrrev_b32 v2, 6, v0")
    e("s_nop 0")
    e("v_readfirstlane_b32 s24, v2")
    e("s_and_b32 s25, s2, 7")
    e("s_lshl_b32 s25, s25, 2")
    e("s_lshr_b32 s26, s2, 3")
    e("s_and_b32 s26, s26, 3")
    e("s_or_b32 s25, s25, s26")
    e("s_lshr_b32 s26, s2, 5")
    e("s_lshl_b32 s31, s25, 3")
    e("s_add_u32 s31, s31, s26")
    e("s_waitcnt lgkmcnt(0)")
    srd(44, 4, 5, 1280)
    srd(12, 6, 7, KV_BYTES)
    srd(16, 8, 9, KV_BYTES)
    srd(48, 10, 11, 640 * 6144 * 2)
    srd(20, 72, 73, WS_BYTES)
    srd(52, 74, 75, 6144 * 640 * 2)
    srd(56, 78, 79, 256)
    e("s_or_b32 s98, s98, 1")
    e("v_mov_b32 v250, s98")
    e("v_mov_b32 v251, 0")
    e("s_lshl_b32 s27, s25, 2")
    e("v_cmp_eq_u32 vcc, 0, v0")
    e("s_and_saveexec_b64 s[40:41], vcc")
    e("s_cbranch_execz NO_CAS")
    e("buffer_atomic_cmpswap v[250:251], off, s[56:59], s27 sc0")
    e("NO_CAS:")
    e("s_mov_b64 exec, s[40:41]")
    e("v_lshlrev_b32 v3, 2, v1")
    for i in range(5):
        e("buffer_load_dword v%d, v3, s[44:47], 0 offen offset:%d" % (20 + i, i * 256))
    e("v_lshrrev_b32 v9, 4, v1")
    e("v_and_b32 v4, 15, v1")
    e("v_mul_u32_u24 v16, 12288, v9")
    e("v_lshl_add_u32 v16, v4, 4, v16")
    e("s_lshr_b32 s27, s26, 1")
    e("s_mul_i32 s27, s27, 160")
    e("s_mul_i32 s30, s24, 20")
    e("s_add_u32 s27, s27, s30")
    e("s_mov_b32 s39, s27")
    e("s_mul_i32 s27, s27, 12288")
    e("s_mul_i32 s30, s25, 384")
    e("s_add_u32 s27, s27, s30")
    e("s_and_b32 s30, s26, 1")
    e("s_mul_i32 s30, s30, 192")
    e("s_add_u32 s27, s27, s30")
    e("v_cmp_gt_u32 vcc, 12, v4")
    e("s_and_saveexec_b64 s[40:41], vcc")
    for n in range(5):
        e("buffer_load_dwordx4 v[%d:%d], v16, s[48:51], s27 offen nt" % (32 + 4 * n, 35 + 4 * n))
        if n < 4:
            e("s_add_u32 s27, s27, %d" % (4 * 12288))
    e("s_mov_b64 exec, s[40:41]")
    stamp(0)
    for b in range(3):
        e("v_add_u32 v5, %d, v1" % (64 * b))
        e("v_mul_u32_u24 v6, 2731, v5")
        e("v_lshrrev_b32 v4, 16, v6")
        e("v_lshlrev_b32 v%d, 2, v4" % (13 + b))
    e("s_mul_i32 s28, s25, %d" % HEAD_STRIDE)
    e("s_lshl_b32 s29, s26, 9")
    e("s_lshl_b32 s30, s24, 6")
    e("s_add_u32 s29, s29, s30")
    e("s_add_u32 s29, s29, %d" % WIN0)
    e("s_mul_i32 s29, s29, 384")
    e("s_add_u32 s28, s28, s29")
    e("v_and_b32 v8, 15, v1")
    e("v_mul_u32_u24 v8, 384, v8")
    e("v_lshl_add_u32 v8, v9, 4, v8")
    e("v_mul_u32_u24 v5, %d, v2" % (3 * 72 * 32))
    e("v_lshl_add_u32 v5, v1, 5, v5")
    e("v_lshlrev_b32 v6, 4, v1")
    e("v_lshrrev_b32 v4, 3, v0")
    e("v_and_b32 v7, 7, v0")
    for b in range(3):
        e("v_add_u32 v17, %d, v4" % (8 * b))
        e("v_subrev_u32 v3, 24, v17")
        e("v_cmp_le_u32 vcc, 24, v17")
        e("s_nop 1")
        e("v_cndmask_b32 v17, v17, v3, vcc")
        e("v_lshlrev_b32 v17, 5, v17")
        e("v_lshl_add_u32 v%d, v7, 2, v17" % (10 + b))
    e("s_waitcnt vmcnt(5)")
    e("v_readfirstlane_b32 s38, v250")
    for i in range(4, -1, -1):
        e("v_and_b32 v%d, 0xffff0000, v%d" % (22 + 2 * i + 1, 20 + i))
        e("v_lshlrev_b32 v%d, 16, v%d" % (22 + 2 * i, 20 + i))
    e("s_cmp_eq_u32 s38, 0")
    e("s_cselect_b32 s38, s98, s38")
    e("s_cmp_eq_u32 s24, 0")
    e("s_cbranch_scc0 NO_NW")
    e("v_mov_b32 v250, s38")
    e("v_mov_b32 v251, 0")
    e("ds_write_b32 v251, v250 offset:%d" % LN)
    e("NO_NW:")
    layernorm(22, 10, 248, 36)
    e("v_mul_u32_u24 v17, 2560, v2")
    e("v_add_u32 v17, %d, v17" % LX)
    e("v_lshl_add_u32 v7, v1, 3, v17")
    for i in range(5):
        e("ds_write_b64 v7, v[%d:%d] offset:%d" % (22 + 2 * i, 23 + 2 * i, i * 512))
    e("s_lshl_b32 s39, s39, 2")
    e("v_lshl_add_u32 v17, v9, 2, v17")
    e("v_add_u32 v17, s39, v17")
    e("s_waitcnt lgkmcnt(0)")
    for n in range(5):
        e("ds_read_b32 v%d, v17 offset:%d" % (20 + n, n * 16))
    for i in range(8):
        e("v_mov_b32 v%d, 0" % (248 + i))
    e("s_waitcnt vmcnt(0) lgkmcnt(0)")
    stamp(1)
    for n in range(5):
        for d in range(4):
            e("v_lshlrev_b32 v30, 16, v%d" % (32 + 4 * n + d))
            e("v_and_b32 v31, 0xffff0000, v%d" % (32 + 4 * n + d))
            e("v_fmac_f32 v%d, v30, v%d" % (248 + 2 * d, 20 + n))
            e("v_fmac_f32 v%d, v31, v%d" % (249 + 2 * d, 20 + n))
    e("v_lshlrev_b32 v3, 5, v0")
    e("ds_write_b128 v3, v[248:251] offset:%d" % LQD)
    e("ds_write_b128 v3, v[252:255] offset:%d" % (LQD + 16))
    e("s_waitcnt lgkmcnt(0)")
    e("s_barrier")
    e("v_mov_b32 v251, 0")
    e("ds_read_b32 v250, v251 offset:%d" % LN)
    e("s_waitcnt lgkmcnt(0)")
    e("v_readfirstlane_b32 s38, v250")
    e("s_nop 3")
    e("s_mov_b32 s29, s28")
    e("s_mov_b32 s30, s28")
    e("s_cmp_ge_u32 s24, 3")
    e("s_cbranch_scc1 Q_OTHER")
    e("s_cmp_ge_u32 s24, 2")
    e("s_cbranch_scc1 Q_POLL")
    e("v_lshrrev_b32 v3, 3, v0")
    e("v_and_b32 v4, 7, v0")
    e("v_lshlrev_b32 v3, 5, v3")
    e("v_lshl_add_u32 v3, v4, 2, v3")
    for k in range(32):
        e("ds_read_b32 v%d, v3 offset:%d" % (32 + k, LQD + k * 512))
    e("s_waitcnt lgkmcnt(0)")
    for k in range(1, 32):
        e("v_add_f32 v32, v32, v%d" % (32 + k))
    e("v_mov_b32 v33, s38")
    e("s_lshl_b32 s27, s31, 10")
    e("s_add_u32 s27, s27, %d" % WS_QP)
    e("v_lshlrev_b32 v3, 3, v0")
    e("v_cmp_gt_u32 vcc, 96, v0")
    e("s_and_saveexec_b64 s[40:41], vcc")
    e("buffer_store_dwordx2 v[32:33], v3, s[20:23], s27 offen sc1")
    e("s_mov_b64 exec, s[40:41]")
    stamp(2)
    e("Q_POLL:")
    e("s_lshl_b32 s27, s25, 13")
    e("s_add_u32 s27, s27, %d" % WS_QP)
    e("v_cmp_le_u32 vcc, 96, v0")
    e("v_lshlrev_b32 v3, 3, v0")
    e("v_add_u32 v4, %d, v3" % (1024 - 768))
    e("s_nop 1")
    e("v_cndmask_b32 v3, v3, v4, vcc")
    e("s_add_u32 s33, s27, 4096")
    poll_begin("PQ")
    for kp in range(4):
        e("buffer_load_dwordx2 v[%d:%d], v3, s[20:23], %s offen offset:%d sc1" % (32 + 2 * kp, 33 + 2 * kp, "s27" if kp < 2 else "s33", (kp % 2) * 2048))
    e("s_waitcnt vmcnt(0)")
    e("v_cmp_ne_u32 vcc, s38, v33")
    for kp in range(1, 4):
        e("v_cmp_ne_u32 s[42:43], s38, v%d" % (33 + 2 * kp))
        e("s_or_b64 vcc, vcc, s[42:43]")
    poll_end("PQ")
    e("v_add_f32 v32, v32, v34")
    e("v_add_f32 v36, v36, v38")
    e("v_add_f32 v32, v32, v36")
    e("v_cvt_pk_bf16_f32 v32, v32, v32")
    e("v_lshlrev_b32 v4, 1, v0")
    e("ds_write_b16 v4, v32 offset:%d" % LQ)
    stamp(3)
    e("s_mov_b32 s37, 0")
    e("s_branch Q_DONE")
    e("Q_OTHER:")
    for i in range(PREK):
        k_load(i)
    e("s_mov_b32 s37, 1")
    e("Q_DONE:")
    e("s_waitcnt lgkmcnt(0)")
    e("s_barrier")
    stamp(4)
    e("v_lshrrev_b32 v3, 3, v0")
    e("v_mul_u32_u24 v3, %d, v3" % (72 * 32))
    e("v_and_b32 v4, 7, v0")
    e("v_lshl_add_u32 v3, v4, 5, v3")
    for i in range(4):
        e("v_mov_b32 v%d, 0" % (28 + i))
    e("v_cmp_gt_u32 vcc, 192, v0")
    e("s_and_saveexec_b64 s[40:41], vcc")
    e("ds_write_b128 v3, v[28:31] offset:%d" % (LA + 64 * 32))
    e("ds_write_b128 v3, v[28:31] offset:%d" % (LA + 64 * 32 + 16))
    e("s_mov_b64 exec, s[40:41]")
    e("v_lshlrev_b32 v4, 4, v9")
    for t in range(6):
        e("ds_read_b128 v[%d:%d], v4 offset:%d" % (QR + 4 * t, QR + 4 * t + 3, LQ + t * 64))
    if PREK:
        e("s_cmp_eq_u32 s37, 1")
        e("s_cbranch_scc1 K_REST")
        for i in range(PREK):
            k_load(i)
        e("K_REST:")
    for i in range(PREK, 24):
        k_load(i)
        if i >= DEPTH:
            e("s_waitcnt vmcnt(%d)" % DEPTH)
    for T in range(4):
        for i in range(4):
            e("v_mov_b32 v%d, 0" % (SRS[T] + i))
    e("s_waitcnt lgkmcnt(0)")
    nv = 0
    for i in range(24):
        T, t = i // 6, i % 6
        r = KR + i * 4
        e("s_waitcnt vmcnt(%d)" % (23 - i + nv))
        e("v_mfma_f32_16x16x32_bf16 v[%d:%d], v[%d:%d], v[%d:%d], v[%d:%d]" %
          (SRS[T], SRS[T] + 3, r, r + 3, QR + 4 * t, QR + 4 * t + 3, SRS[T], SRS[T] + 3))
        while nv < 24 and (23 - i + nv) < DEPTH:
            v_load(nv); nv += 1
    stamp(5)
    while nv < 24:
        v_load(nv); nv += 1
    e("s_cmp_ge_u32 s24, 6")
    e("s_cbranch_scc1 NO_WO")
    e("s_mul_i32 s27, s25, 192")
    e("s_mul_i32 s29, s26, 24")
    e("s_add_u32 s27, s27, s29")
    e("s_mul_i32 s27, s27, 1280")
    e("s_mul_i32 s29, s24, 5120")
    e("s_add_u32 s27, s27, s29")
    e("s_add_u32 s29, s29, %d" % LW)
    for i in range(5):
        e("s_mov_b32 m0, s29")
        e("s_nop 0")
        e("buffer_load_dwordx4 v6, s[52:55], s27 offen nt lds")
        e("s_add_u32 s27, s27, 1024")
        e("s_add_u32 s29, s29, 1024")
    e("s_mov_b32 s37, 5")
    e("s_branch WO_D")
    e("NO_WO:")
    e("s_mov_b32 s37, 0")
    e("WO_D:")
    SC = [SRS[T] + i for T in range(4) for i in range(4)]
    e("v_max3_f32 v252, v%d, v%d, v%d" % (SC[0], SC[1], SC[2]))
    for i in range(3, 16, 2):
        if i + 1 < 16:
            e("v_max3_f32 v252, v252, v%d, v%d" % (SC[i], SC[i + 1]))
        else:
            e("v_max_f32 v252, v252, v%d" % SC[i])
    e("s_nop 1")
    e("v_readlane_b32 s32, v252, 0")
    e("v_readlane_b32 s33, v252, 16")
    e("v_readlane_b32 s34, v252, 32")
    e("v_readlane_b32 s35, v252, 48")
    e("s_mov_b32 s36, %s" % C_SM)
    e("s_nop 3")
    e("v_mov_b32 v252, s32")
    e("v_max_f32 v252, s33, v252")
    e("v_max_f32 v252, s34, v252")
    e("v_max_f32 v252, s35, v252")
    e("v_mul_f32 v254, s36, v252")
    e("v_mov_b32 v253, 0")
    for i in range(16):
        e("v_fma_f32 v%d, v%d, s36, -v254" % (SC[i], SC[i]))
        e("v_exp_f32 v%d, v%d" % (SC[i], SC[i]))
        e("s_nop 0")
        e("v_add_f32 v253, v253, v%d" % SC[i])
    e("s_nop 1")
    e("v_readlane_b32 s32, v253, 0")
    e("v_readlane_b32 s33, v253, 16")
    e("v_readlane_b32 s34, v253, 32")
    e("v_readlane_b32 s35, v253, 48")
    e("s_nop 3")
    e("v_mov_b32 v253, s32")
    e("v_add_f32 v253, s33, v253")
    e("v_add_f32 v253, s34, v253")
    e("v_add_f32 v253, s35, v253")
    e("v_lshlrev_b32 v7, 8, v2")
    e("v_add_u32 v7, %d, v7" % LP)
    e("v_lshl_add_u32 v4, v9, 4, v7")
    for T in range(4):
        e("ds_write_b128 v4, v[%d:%d] offset:%d" % (SRS[T], SRS[T] + 3, T * 64))
    e("v_lshlrev_b32 v4, 3, v2")
    e("ds_write_b64 v4, v[252:253] offset:%d" % LM)
    e("s_waitcnt lgkmcnt(0)")
    for b in range(3):
        e("v_add_u32 v4, v7, v%d" % (13 + b))
        for a in range(0, 8, 2):
            e("ds_read2_b32 v[%d:%d], v4 offset0:%d offset1:%d" %
              (PR + b * 8 + a, PR + b * 8 + a + 1, a * 8, (a + 1) * 8))
    for i in range(24):
        e("v_mov_b32 v%d, 0" % (AR + i))
    e("s_waitcnt lgkmcnt(0)")
    e("s_cmp_eq_u32 s37, 0")
    e("s_cbranch_scc1 PV_B")
    for variant, extra in (("A", 5), ("B", 0)):
        if variant == "B":
            e("PV_B:")
        for n in range(24):
            a, b = n // 3, n % 3
            r = VR + n * 4
            e("s_waitcnt vmcnt(%d)" % (23 + extra - n))
            for d in range(4):
                e("v_lshlrev_b32 v3, 16, v%d" % (r + d))
                e("v_and_b32 v4, 0xffff0000, v%d" % (r + d))
                e("v_fmac_f32 v%d, v3, v%d" % (AR + b * 8 + 2 * d, PR + b * 8 + a))
                e("v_fmac_f32 v%d, v4, v%d" % (AR + b * 8 + 2 * d + 1, PR + b * 8 + a))
        if variant == "A":
            e("s_branch PV_D")
    e("PV_D:")
    stamp(6)
    for b in range(3):
        e("ds_write_b128 v5, v[%d:%d] offset:%d" % (AR + b * 8, AR + b * 8 + 3, LA + b * 72 * 32))
        e("ds_write_b128 v5, v[%d:%d] offset:%d" % (AR + b * 8 + 4, AR + b * 8 + 7, LA + b * 72 * 32 + 16))
    e("s_waitcnt vmcnt(0) lgkmcnt(0)")
    e("s_barrier")
    stamp(7)
    e("s_cmp_ge_u32 s24, 3")
    e("s_cbranch_scc1 GATE")
    e("v_mov_b32 v4, 0")
    for i in range(4):
        e("ds_read_b128 v[%d:%d], v4 offset:%d" % (32 + 4 * i, 35 + 4 * i, LM + 16 * i))
    e("s_waitcnt lgkmcnt(0)")
    e("v_max3_f32 v3, v32, v34, v36")
    e("v_max3_f32 v3, v3, v38, v40")
    e("v_max3_f32 v3, v3, v42, v44")
    e("v_max_f32 v3, v3, v46")
    e("v_mov_b32 v7, 0")
    for w in range(NW):
        e("v_sub_f32 v%d, v%d, v3" % (48 + w, 32 + 2 * w))
        e("v_mul_f32 v%d, s36, v%d" % (48 + w, 48 + w))
        e("v_exp_f32 v%d, v%d" % (48 + w, 48 + w))
        e("s_nop 0")
        e("v_fmac_f32 v7, v%d, v%d" % (48 + w, 33 + 2 * w))
    reduce_dump(60, 48, 80)
    e("v_mov_b32 v81, s38")
    e("s_lshl_b32 s27, s31, 11")
    e("s_add_u32 s27, s27, %d" % WS_P)
    e("v_lshlrev_b32 v4, 3, v0")
    e("buffer_store_dwordx2 v[80:81], v4, s[20:23], s27 offen sc1")
    e("v_mov_b32 v84, v3")
    e("v_mov_b32 v85, v7")
    e("v_mov_b32 v86, s38")
    e("v_mov_b32 v87, s38")
    e("v_cmp_eq_u32 vcc, 0, v0")
    e("s_and_saveexec_b64 s[40:41], vcc")
    e("buffer_store_dwordx4 v[84:87], v4, s[20:23], s27 offen offset:1536 sc1")
    e("s_mov_b64 exec, s[40:41]")
    stamp(8)
    e("s_cmp_eq_u32 s24, 0")
    e("s_cbranch_scc0 HOP1_D")
    e("s_lshl_b32 s27, s25, 14")
    e("s_add_u32 s27, s27, %d" % WS_P)
    e("s_mul_i32 s29, s26, 192")
    e("v_min_u32 v3, 23, v1")
    e("v_lshlrev_b32 v3, 3, v3")
    e("v_add_u32 v3, s29, v3")
    e("v_mov_b32 v4, 1536")
    e("s_add_u32 s32, s27, 4096")
    e("s_add_u32 s33, s27, 8192")
    e("s_add_u32 s34, s27, 12288")
    poll_begin("PO")
    for s_ in range(NSPLIT):
        sb = ["s27", "s32", "s33", "s34"][s_ // 2]
        e("buffer_load_dwordx2 v[%d:%d], v3, s[20:23], %s offen offset:%d sc1" % (64 + 2 * s_, 65 + 2 * s_, sb, (s_ % 2) * 2048))
        e("buffer_load_dwordx4 v[%d:%d], v4, s[20:23], %s offen offset:%d sc1" % (80 + 4 * s_, 83 + 4 * s_, sb, (s_ % 2) * 2048))
    e("s_waitcnt vmcnt(0)")
    e("v_cmp_ne_u32 vcc, s38, v65")
    for s_ in range(NSPLIT):
        if s_ > 0:
            e("v_cmp_ne_u32 s[42:43], s38, v%d" % (65 + 2 * s_))
            e("s_or_b64 vcc, vcc, s[42:43]")
        e("v_cmp_ne_u32 s[42:43], s38, v%d" % (82 + 4 * s_))
        e("s_or_b64 vcc, vcc, s[42:43]")
    poll_end("PO")
    stamp(9)
    e("v_mov_b32 v3, v80")
    for s_ in range(1, NSPLIT):
        e("v_max_f32 v3, v3, v%d" % (80 + 4 * s_))
    e("v_mov_b32 v8, 0")
    e("v_mov_b32 v9, 0")
    for s_ in range(NSPLIT):
        e("v_sub_f32 v10, v%d, v3" % (80 + 4 * s_))
        e("v_mul_f32 v10, s36, v10")
        e("v_exp_f32 v10, v10")
        e("s_nop 0")
        e("v_fmac_f32 v8, v10, v%d" % (64 + 2 * s_))
        e("v_fmac_f32 v9, v10, v%d" % (81 + 4 * s_))
    e("v_rcp_f32 v9, v9")
    e("s_nop 0")
    e("v_mul_f32 v8, v8, v9")
    rbf(8, 10)
    e("v_lshlrev_b32 v3, 2, v1")
    e("ds_write_b32 v3, v8 offset:%d" % LO)
    e("s_waitcnt lgkmcnt(0)")
    e("s_branch HOP1_D")
    e("GATE:")
    e("s_cmp_ge_u32 s24, 6")
    e("s_cbranch_scc1 HOP1_D")
    e("s_sub_u32 s33, s24, 3")
    e("s_lshl_b32 s33, s33, 8")
    e("s_add_u32 s33, s33, s2")
    e("s_cmp_ge_u32 s33, 640")
    e("s_cbranch_scc1 HOP1_D")
    srd(80, 64, 65, 3072)
    srd(84, 66, 67, 3072)
    srd(88, 68, 69, 3072)
    srd(92, 70, 71, 2)
    e("v_lshlrev_b32 v8, 4, v1")
    for j in range(3):
        e("buffer_load_dwordx4 v[%d:%d], v8, s[80:83], 0 offen offset:%d" % (140 + 4 * j, 143 + 4 * j, j * 1024))
        e("buffer_load_dwordx4 v[%d:%d], v8, s[84:87], 0 offen offset:%d" % (152 + 4 * j, 155 + 4 * j, j * 1024))
        e("buffer_load_dwordx4 v[%d:%d], v8, s[88:91], 0 offen offset:%d" % (164 + 4 * j, 167 + 4 * j, j * 1024))
    e("v_mov_b32 v9, 0")
    e("buffer_load_ushort v176, v9, s[92:95], 0 offen")
    e("v_mul_u32_u24 v6, 2560, v2")
    e("v_add_u32 v6, %d, v6" % LX)
    e("v_lshl_add_u32 v7, v1, 3, v6")
    for i in range(5):
        e("ds_read_b64 v[%d:%d], v7 offset:%d" % (20 + 2 * i, 21 + 2 * i, i * 512))
    e("s_waitcnt lgkmcnt(0)")
    layernorm(20, 10, 30, 40)
    for i in range(5):
        e("ds_write_b64 v7, v[%d:%d] offset:%d" % (20 + 2 * i, 21 + 2 * i, i * 512))
    e("v_mov_b32 v9, s33")
    e("v_lshl_add_u32 v10, v9, 2, v6")
    e("s_waitcnt lgkmcnt(0)")
    e("ds_read_b32 v11, v10")
    e("v_mov_b32 v12, 0")
    e("s_mov_b32 s34, 0x3d372713")
    e("s_mov_b32 s35, %s" % C_GELU)
    e("s_waitcnt vmcnt(0) lgkmcnt(0)")
    for j in range(3):
        for d in range(4):
            for half in range(2):
                op = "v_lshlrev_b32 v%d, 16, v%d" if half == 0 else "v_and_b32 v%d, 0xffff0000, v%d"
                e(op % (13, 140 + 4 * j + d))
                e(op % (14, 152 + 4 * j + d))
                e(op % (15, 164 + 4 * j + d))
                e("v_mul_f32 v13, v13, v11")
                rbf(13, 16)
                e("v_add_f32 v13, v13, v14")
                rbf(13, 16)
                e("v_mul_f32 v16, v13, v13")
                e("v_mul_f32 v16, s34, v16")
                e("v_fma_f32 v16, v16, v13, v13")
                e("v_mul_f32 v16, s35, v16")
                e("v_exp_f32 v16, v16")
                e("s_nop 0")
                e("v_add_f32 v16, 1.0, v16")
                e("v_rcp_f32 v16, v16")
                e("s_nop 0")
                e("v_mul_f32 v13, v13, v16")
                rbf(13, 16)
                e("v_fmac_f32 v12, v13, v15")
    wave_sum(12, 37)
    e("v_mov_b32 v12, s37")
    rbf(12, 16)
    e("v_lshlrev_b32 v176, 16, v176")
    e("v_add_f32 v12, v12, v176")
    rbf(12, 16)
    e("v_mul_f32 v13, 0xbfb8aa3b, v12")
    e("v_exp_f32 v13, v13")
    e("s_nop 0")
    e("v_add_f32 v13, 1.0, v13")
    e("v_rcp_f32 v13, v13")
    e("s_nop 0")
    e("v_mul_f32 v12, v12, v13")
    rbf(12, 16)
    e("v_mov_b32 v13, s38")
    e("v_lshlrev_b32 v9, 3, v9")
    e("s_mov_b32 s27, %d" % WS_G)
    e("v_cmp_eq_u32 vcc, 0, v1")
    e("s_and_saveexec_b64 s[40:41], vcc")
    e("buffer_store_dwordx2 v[12:13], v9, s[20:23], s27 offen sc1")
    e("s_mov_b64 exec, s[40:41]")
    e("HOP1_D:")
    e("s_barrier")
    stamp(10)
    e("v_mul_u32_u24 v3, 52429, v0")
    e("v_lshrrev_b32 v3, 22, v3")
    e("v_mul_u32_u24 v4, 80, v3")
    e("v_sub_u32 v4, v0, v4")
    e("v_cmp_gt_u32 vcc, 480, v0")
    e("s_and_saveexec_b64 s[40:41], vcc")
    e("s_cbranch_execz GEMV_D")
    e("v_mul_u32_u24 v5, 5120, v3")
    e("v_lshl_add_u32 v5, v4, 4, v5")
    e("v_add_u32 v5, %d, v5" % LW)
    e("v_lshlrev_b32 v6, 4, v3")
    e("ds_read_b128 v[20:23], v6 offset:%d" % LO)
    for i in range(4):
        e("ds_read_b128 v[%d:%d], v5 offset:%d" % (32 + 4 * i, 35 + 4 * i, i * 1280))
    for c in range(8):
        e("v_mov_b32 v%d, 0" % (48 + c))
    e("s_waitcnt lgkmcnt(0)")
    for i in range(4):
        for d in range(4):
            e("v_lshlrev_b32 v7, 16, v%d" % (32 + 4 * i + d))
            e("v_and_b32 v8, 0xffff0000, v%d" % (32 + 4 * i + d))
            e("v_fmac_f32 v%d, v7, v%d" % (48 + 2 * d, 20 + i))
            e("v_fmac_f32 v%d, v8, v%d" % (49 + 2 * d, 20 + i))
    e("v_mul_u32_u24 v5, 2560, v3")
    e("v_lshl_add_u32 v5, v4, 5, v5")
    e("ds_write_b128 v5, v[48:51] offset:%d" % LF)
    e("ds_write_b128 v5, v[52:55] offset:%d" % (LF + 16))
    e("GEMV_D:")
    e("s_mov_b64 exec, s[40:41]")
    e("s_waitcnt lgkmcnt(0)")
    e("s_barrier")
    e("v_lshlrev_b32 v3, 2, v0")
    for r in range(6):
        e("ds_read_b32 v%d, v3 offset:%d" % (20 + r, LF + r * 2560))
    e("v_cmp_gt_u32 vcc, 128, v0")
    e("s_and_saveexec_b64 s[40:41], vcc")
    for r in range(6):
        e("ds_read_b32 v%d, v3 offset:%d" % (30 + r, LF + r * 2560 + 2048))
    e("s_mov_b64 exec, s[40:41]")
    e("s_waitcnt lgkmcnt(0)")
    for r in range(1, 6):
        e("v_add_f32 v20, v20, v%d" % (20 + r))
        e("v_add_f32 v30, v30, v%d" % (30 + r))
    e("v_mov_b32 v21, s38")
    e("v_mov_b32 v31, s38")
    e("s_mul_i32 s27, s2, 5120")
    e("s_add_u32 s27, s27, %d" % WS_F)
    e("v_lshlrev_b32 v3, 3, v0")
    e("buffer_store_dwordx2 v[20:21], v3, s[20:23], s27 offen sc1")
    e("s_add_u32 s27, s27, 4096")
    e("s_and_saveexec_b64 s[40:41], vcc")
    e("buffer_store_dwordx2 v[30:31], v3, s[20:23], s27 offen sc1")
    e("s_mov_b64 exec, s[40:41]")
    stamp(11)
    e("s_cmp_ge_u32 s2, 40")
    e("s_cbranch_scc1 K_END")
    e("v_lshrrev_b32 v3, 3, v1")
    e("v_lshl_add_u32 v3, v2, 5, v3")
    e("v_and_b32 v4, 7, v3")
    e("v_lshlrev_b32 v4, 4, v4")
    e("v_mul_u32_u24 v3, 5120, v3")
    e("v_and_b32 v5, 7, v1")
    e("v_lshl_add_u32 v3, v5, 4, v3")
    e("s_lshl_b32 s27, s2, 7")
    e("s_add_u32 s27, s27, %d" % WS_F)
    e("s_add_u32 s29, s27, %d" % (16 * 5120))
    poll_begin("PF")
    e("buffer_load_dwordx4 v[40:43], v4, s[56:59], 0 offen sc1")
    for k in range(4):
        sb = "s27" if k < 2 else "s29"
        e("buffer_load_dwordx4 v[%d:%d], v3, s[20:23], %s offen offset:%d sc1" % (20 + 4 * k, 23 + 4 * k, sb, 0))
        if k % 2 == 0:
            e("s_add_u32 %s, %s, %d" % (sb, sb, 8 * 5120))
    e("s_sub_u32 s27, s27, %d" % (8 * 5120))
    e("s_sub_u32 s29, s29, %d" % (8 * 5120))
    e("s_waitcnt vmcnt(0)")
    e("v_cmp_eq_u32 vcc, 0, v40")
    for k in range(4):
        if k > 0:
            e("v_cmp_eq_u32 s[42:43], 0, v%d" % (40 + k))
            e("s_or_b64 vcc, vcc, s[42:43]")
        e("v_cmp_ne_u32 s[42:43], v%d, v%d" % (40 + k, 21 + 4 * k))
        e("s_or_b64 vcc, vcc, s[42:43]")
        e("v_cmp_ne_u32 s[42:43], v%d, v%d" % (40 + k, 23 + 4 * k))
        e("s_or_b64 vcc, vcc, s[42:43]")
    poll_end("PF")
    stamp(12)
    for k in range(1, 4):
        e("v_add_f32 v20, v20, v%d" % (20 + 4 * k))
        e("v_add_f32 v22, v22, v%d" % (22 + 4 * k))
    e("v_mov_b32 v21, v22")
    e("v_lshlrev_b32 v5, 3, v0")
    e("ds_write_b64 v5, v[20:21] offset:%d" % LR)
    e("s_waitcnt lgkmcnt(0)")
    e("s_barrier")
    e("s_cmp_eq_u32 s24, 0")
    e("s_cbranch_scc0 K_END")
    e("v_and_b32 v3, 15, v1")
    e("v_lshrrev_b32 v4, 4, v1")
    e("v_lshlrev_b32 v5, 10, v4")
    e("v_lshl_add_u32 v5, v3, 2, v5")
    for k in range(16):
        e("ds_read_b32 v%d, v5 offset:%d" % (32 + k, LR + k * 64))
    e("s_lshl_b32 s27, s2, 5")
    e("v_lshlrev_b32 v7, 1, v3")
    e("buffer_load_ushort v9, v7, s[44:47], s27 offen")
    e("s_lshl_b32 s29, s2, 4")
    e("v_add_u32 v10, s29, v3")
    e("v_and_b32 v11, 7, v10")
    e("v_lshlrev_b32 v11, 4, v11")
    e("v_lshrrev_b32 v12, 3, v10")
    e("v_and_b32 v12, 3, v12")
    e("v_lshl_add_u32 v11, v12, 2, v11")
    e("v_lshlrev_b32 v10, 3, v10")
    e("s_mov_b32 s29, %d" % WS_G)
    poll_begin("PG")
    e("buffer_load_dword v14, v11, s[56:59], 0 offen sc1")
    e("buffer_load_dwordx2 v[12:13], v10, s[20:23], s29 offen sc1")
    e("s_waitcnt vmcnt(0)")
    e("v_cmp_eq_u32 vcc, 0, v14")
    e("v_cmp_ne_u32 s[42:43], v14, v13")
    e("s_or_b64 vcc, vcc, s[42:43]")
    poll_end("PG")
    e("s_waitcnt lgkmcnt(0)")
    for k in range(1, 16):
        e("v_add_f32 v32, v32, v%d" % (32 + k))
    e("v_lshlrev_b32 v5, 2, v1")
    e("ds_write_b32 v5, v32 offset:%d" % (LR + 8192))
    e("v_lshlrev_b32 v6, 2, v3")
    e("s_waitcnt lgkmcnt(0)")
    for k in range(4):
        e("ds_read_b32 v%d, v6 offset:%d" % (40 + k, LR + 8192 + k * 64))
    e("s_waitcnt lgkmcnt(0)")
    e("v_add_f32 v40, v40, v41")
    e("v_add_f32 v42, v42, v43")
    e("v_add_f32 v40, v40, v42")
    rbf(40, 10)
    e("v_mul_f32 v40, v40, v12")
    rbf(40, 10)
    e("v_lshlrev_b32 v9, 16, v9")
    e("v_add_f32 v40, v40, v9")
    e("v_cvt_pk_bf16_f32 v40, v40, v40")
    srd(96, 76, 77, 1280)
    e("v_cmp_gt_u32 vcc, 16, v1")
    e("s_and_saveexec_b64 s[40:41], vcc")
    e("buffer_store_short v40, v7, s[96:99], s27 offen")
    stamp(13)
    e("K_END:")
    e("s_endpgm")

e(HEADER.rstrip())
e("; @launch grid=(%d,1,1) block=(512,1,1) lds=%d" % (A_WG, A_LDS))
e('.amdgcn_target "amdgcn-amd-amdhsa--gfx950"')
e(".text")
gen_main()
e('.section .rodata,"a"')
descriptor(NAME + "_kernel", 256)
open(OUT, "w").write("\n".join(L) + "\n")
```

```python
import sys, struct, math, os
LATE = int(os.environ.get('LATE','0'))

NAME = "recurrent_scan__sliding_block_cached__mixer_token_mlp__decode"
OUT = sys.argv[1] if len(sys.argv) > 1 else "cdna_kernels/%s.s" % NAME
HEADER = open("cdna_kernels/%s.s.ref" % NAME).read().split("; Override launch")[0]

WS_QP = 0
WS_G = 0x40000
WS_P = 0x80000
WS_F = 0x100000
WS_T = 0x280000
WS_BYTES = 0x300000
NSPLIT = 8

L = []
import re
def e(s=""):
    if s.startswith("buffer_"):
        m = re.search(r"offset:(\d+)", s)
        assert not m or int(m.group(1)) < 4096, s
    L.append(s)
def fhex(x):
    return "0x%08x" % struct.unpack("<I", struct.pack("<f", x))[0]
C_SM = fhex(math.log2(math.e) / math.sqrt(192.0))
C_GELU = fhex(-2.0 * math.sqrt(2.0 / math.pi) * math.log2(math.e))

def kernel_begin(name):
    e(".globl %s" % name)
    e(".p2align 8")
    e(".type %s,@function" % name)
    e("%s:" % name)

def srd(d, lo, hi, nbytes):
    e("s_mov_b32 s%d, s%d" % (d, lo))
    e("s_and_b32 s%d, s%d, 0xffff" % (d + 1, hi))
    e("s_mov_b32 s%d, 0x%x" % (d + 2, nbytes))
    e("s_mov_b32 s%d, 0x00020000" % (d + 3))

def wave_sum(v, tmp_s):
    e("s_nop 1")
    e("v_add_f32_dpp v%d, v%d, v%d quad_perm:[1,0,3,2] row_mask:0xf bank_mask:0xf" % (v, v, v))
    e("s_nop 1")
    e("v_add_f32_dpp v%d, v%d, v%d quad_perm:[2,3,0,1] row_mask:0xf bank_mask:0xf" % (v, v, v))
    e("s_nop 1")
    e("v_add_f32_dpp v%d, v%d, v%d row_half_mirror row_mask:0xf bank_mask:0xf" % (v, v, v))
    e("s_nop 1")
    e("v_add_f32_dpp v%d, v%d, v%d row_mirror row_mask:0xf bank_mask:0xf" % (v, v, v))
    e("s_nop 1")
    e("v_add_f32_dpp v%d, v%d, v%d row_bcast:15 row_mask:0xa bank_mask:0xf" % (v, v, v))
    e("s_nop 1")
    e("v_add_f32_dpp v%d, v%d, v%d row_bcast:31 row_mask:0xc bank_mask:0xf" % (v, v, v))
    e("s_nop 1")
    e("v_readlane_b32 s%d, v%d, 63" % (tmp_s, v))
    e("s_nop 3")

def rbf(v, tmp):
    e("v_cvt_pk_bf16_f32 v%d, v%d, v%d" % (tmp, v, v))
    e("v_lshlrev_b32 v%d, 16, v%d" % (v, tmp))

def layernorm(xv, n, t0, s0):
    e("v_mov_b32 v%d, v%d" % (t0, xv))
    for i in range(1, n):
        e("v_add_f32 v%d, v%d, v%d" % (t0, t0, xv + i))
    wave_sum(t0, s0)
    e("v_mov_b32 v%d, s%d" % (t0, s0))
    e("v_mul_f32 v%d, 0x3acccccd, v%d" % (t0, t0))
    e("v_mov_b32 v%d, 0" % (t0 + 1))
    for i in range(n):
        e("v_sub_f32 v%d, v%d, v%d" % (t0 + 2, xv + i, t0))
        e("v_fmac_f32 v%d, v%d, v%d" % (t0 + 1, t0 + 2, t0 + 2))
    wave_sum(t0 + 1, s0 + 1)
    e("v_mov_b32 v%d, s%d" % (t0 + 1, s0 + 1))
    e("v_mul_f32 v%d, 0x3acccccd, v%d" % (t0 + 1, t0 + 1))
    rbf(t0 + 1, t0 + 2)
    e("v_add_f32 v%d, 0x3727c5ac, v%d" % (t0 + 1, t0 + 1))
    rbf(t0 + 1, t0 + 2)
    e("v_sqrt_f32 v%d, v%d" % (t0 + 1, t0 + 1))
    e("s_nop 0")
    rbf(t0 + 1, t0 + 2)
    e("v_rcp_f32 v%d, v%d" % (t0 + 1, t0 + 1))
    e("s_nop 0")
    rbf(t0, t0 + 2)
    for i in range(n):
        e("v_sub_f32 v%d, v%d, v%d" % (xv + i, xv + i, t0))
        rbf(xv + i, t0 + 2)
        e("v_mul_f32 v%d, v%d, v%d" % (xv + i, xv + i, t0 + 1))
        rbf(xv + i, t0 + 2)

def descriptor(name, vgpr, sgpr=102):
    acc = (vgpr + 3) // 4 * 4
    e(".p2align 6")
    e(".amdhsa_kernel %s" % name)
    e("  .amdhsa_next_free_vgpr %d" % vgpr)
    e("  .amdhsa_next_free_sgpr %d" % sgpr)
    e("  .amdhsa_accum_offset %d" % acc)
    e("  .amdhsa_group_segment_fixed_size 0")
    e("  .amdhsa_kernarg_size 104")
    e("  .amdhsa_user_sgpr_count 2")
    e("  .amdhsa_user_sgpr_kernarg_segment_ptr 1")
    e("  .amdhsa_system_sgpr_workgroup_id_x 1")
    e(".end_amdhsa_kernel")


A_WG = 256
HEAD_STRIDE = 32768 * 384
KV_BYTES = 32 * HEAD_STRIDE
WIN0 = (32768 - 4096)
NW = 8
LA = 0
LQ = LA + NW * 3 * 72 * 32
LM = LQ + 512
LN = LM + 64
LP = LN + 64
LO = LP + NW * 256
LX = LO + 1024
LW = LX + 8 * 2560
A_LDS = LW + 30720
LF = 0
LR = 16384
LQD = 32768

VR = 32
QR = 128
KR = 152
PR = 152
AR = 176
SRS = [20, 24, 28, 248]
POLL_LIMIT = 1 << 16
DEPTH = int(os.environ.get("DEPTH", "10"))
PREK = int(os.environ.get("PREK", "0"))
STAMP = int(os.environ.get("STAMP", "0"))

DBGT = int(os.environ.get("DBGT", "0"))
def stamp(i):
    if DBGT:
        lab = "DT%d" % i
        e("s_or_b32 s62, s2, s24")
        e("s_cmp_eq_u32 s62, 0")
        e("s_cbranch_scc0 %s" % lab)
        e("s_memrealtime s[100:101]")
        e("s_waitcnt lgkmcnt(0)")
        e("s_sub_u32 s100, s100, s99")
        e("v_mov_b32 v19, s100")
        e("s_mov_b32 s62, %d" % (i * 4))
        e("buffer_store_dword v19, off, s[56:59], s62")
        e("%s:" % lab)
        return
    if not STAMP: return
    e("s_memrealtime s[100:101]")
    e("s_waitcnt lgkmcnt(0)")
    e("v_mov_b32 v19, s100")
    e("s_lshl_b32 s62, s2, 9")
    e("s_lshl_b32 s63, s24, 6")
    e("s_add_u32 s62, s62, s63")
    e("s_add_u32 s62, s62, %d" % (WS_T + i * 4))
    e("buffer_store_dword v19, off, s[20:23], s62")

def reduce_dump(RR, scale_regs, dst):
    e("v_mov_b32 v%d, 0" % dst)
    def fin(w):
        pb = RR + (w % 2) * 9
        for k in range(1, 9):
            e("v_add_f32 v%d, v%d, v%d" % (pb, pb, pb + k))
        e("v_fmac_f32 v%d, v%d, v%d" % (dst, scale_regs + w, pb))
    for w in range(NW):
        base = RR + (w % 2) * 9
        for b in range(3):
            for k in range(3):
                e("ds_read_b32 v%d, v%d offset:%d" % (base + b * 3 + k, 10 + b,
                                                    LA + (w * 3 + b) * 72 * 32 + k * 24 * 32))
        if w > 0:
            e("s_waitcnt lgkmcnt(9)")
            fin(w - 1)
    e("s_waitcnt lgkmcnt(0)")
    fin(NW - 1)

def poll_begin(label):
    e("s_mov_b32 s60, 0")
    e("%s:" % label)

def poll_end(label):
    e("s_cbranch_vccz %s_D" % label)
    e("s_sleep 1")
    e("s_add_u32 s60, s60, 1")
    e("s_cmp_lt_u32 s60, %d" % POLL_LIMIT)
    e("s_cbranch_scc1 %s" % label)
    e("%s_D:" % label)

def k_load(i):
    T, t = i // 6, i % 6
    r = KR + i * 4
    if t == 0 and T > 0:
        e("s_add_u32 s29, s29, 6144")
    e("buffer_load_dwordx4 v[%d:%d], v8, s[12:15], s29 offen offset:%d nt" % (r, r + 3, t * 64))

def v_load(n):
    r = VR + n * 4
    if n % 4 == 0 and n > 0:
        e("s_add_u32 s30, s30, 4096")
    e("buffer_load_dwordx4 v[%d:%d], v6, s[16:19], s30 offen offset:%d nt" % (r, r + 3, (n % 4) * 1024))

def gen_main():
    kernel_begin(NAME + "_kernel")
    e("s_cmp_ge_u32 s2, %d" % A_WG)
    e("s_cbranch_scc1 K_END")
    e("s_load_dwordx8 s[4:11], s[0:1], 0")
    e("s_load_dwordx2 s[74:75], s[0:1], 32")
    e("s_load_dwordx8 s[64:71], s[0:1], 48")
    e("s_load_dwordx4 s[76:79], s[0:1], 80")
    e("s_load_dwordx2 s[72:73], s[0:1], 96")
    e("s_memrealtime s[98:99]")
    e("v_and_b32 v1, 63, v0")
    e("v_lshrrev_b32 v2, 6, v0")
    e("s_nop 0")
    e("v_readfirstlane_b32 s24, v2")
    e("s_and_b32 s25, s2, 7")
    e("s_lshl_b32 s25, s25, 2")
    e("s_lshr_b32 s26, s2, 3")
    e("s_and_b32 s26, s26, 3")
    e("s_or_b32 s25, s25, s26")
    e("s_lshr_b32 s26, s2, 5")
    e("s_lshl_b32 s31, s25, 3")
    e("s_add_u32 s31, s31, s26")
    e("s_waitcnt lgkmcnt(0)")
    srd(44, 4, 5, 1280)
    srd(12, 6, 7, KV_BYTES)
    srd(16, 8, 9, KV_BYTES)
    srd(48, 10, 11, 640 * 6144 * 2)
    srd(20, 72, 73, WS_BYTES)
    srd(52, 74, 75, 6144 * 640 * 2)
    srd(56, 78, 79, 256)
    e("s_mov_b32 s99, s98")
    e("s_or_b32 s98, s98, 1")
    e("v_mov_b32 v250, s98")
    e("v_mov_b32 v251, 0")
    e("s_lshl_b32 s27, s25, 2")
    e("s_add_u32 s27, s27, 128")
    e("v_cmp_eq_u32 vcc, 0, v0")
    e("s_and_saveexec_b64 s[40:41], vcc")
    e("s_cbranch_execz NO_CAS")
    e("buffer_atomic_cmpswap v[250:251], off, s[56:59], s27 sc0")
    e("NO_CAS:")
    e("s_mov_b64 exec, s[40:41]")
    e("v_lshlrev_b32 v3, 2, v1")
    for i in range(5):
        e("buffer_load_dword v%d, v3, s[44:47], 0 offen offset:%d" % (20 + i, i * 256))
    e("v_lshrrev_b32 v9, 4, v1")
    e("v_and_b32 v4, 15, v1")
    e("v_mul_u32_u24 v16, 12288, v9")
    e("v_lshl_add_u32 v16, v4, 4, v16")
    e("s_lshr_b32 s27, s26, 1")
    e("s_mul_i32 s27, s27, 160")
    e("s_mul_i32 s30, s24, 20")
    e("s_add_u32 s27, s27, s30")
    e("s_mov_b32 s39, s27")
    e("s_mul_i32 s27, s27, 12288")
    e("s_mul_i32 s30, s25, 384")
    e("s_add_u32 s27, s27, s30")
    e("s_and_b32 s30, s26, 1")
    e("s_mul_i32 s30, s30, 192")
    e("s_add_u32 s27, s27, s30")
    e("v_cmp_gt_u32 vcc, 12, v4")
    e("s_and_saveexec_b64 s[40:41], vcc")
    for n in range(5):
        e("buffer_load_dwordx4 v[%d:%d], v16, s[48:51], s27 offen nt" % (32 + 4 * n, 35 + 4 * n))
        if n < 4:
            e("s_add_u32 s27, s27, %d" % (4 * 12288))
    e("s_mov_b64 exec, s[40:41]")
    stamp(0)
    for b in range(3):
        e("v_add_u32 v5, %d, v1" % (64 * b))
        e("v_mul_u32_u24 v6, 2731, v5")
        e("v_lshrrev_b32 v4, 16, v6")
        e("v_lshlrev_b32 v%d, 2, v4" % (13 + b))
    e("s_mul_i32 s28, s25, %d" % HEAD_STRIDE)
    e("s_lshl_b32 s29, s26, 9")
    e("s_lshl_b32 s30, s24, 6")
    e("s_add_u32 s29, s29, s30")
    e("s_add_u32 s29, s29, %d" % WIN0)
    e("s_mul_i32 s29, s29, 384")
    e("s_add_u32 s28, s28, s29")
    e("v_and_b32 v8, 15, v1")
    e("v_mul_u32_u24 v8, 384, v8")
    e("v_lshl_add_u32 v8, v9, 4, v8")
    e("v_mul_u32_u24 v5, %d, v2" % (3 * 72 * 32))
    e("v_lshl_add_u32 v5, v1, 5, v5")
    e("v_lshlrev_b32 v6, 4, v1")
    e("v_lshrrev_b32 v4, 3, v0")
    e("v_and_b32 v7, 7, v0")
    for b in range(3):
        e("v_add_u32 v17, %d, v4" % (8 * b))
        e("v_subrev_u32 v3, 24, v17")
        e("v_cmp_le_u32 vcc, 24, v17")
        e("s_nop 1")
        e("v_cndmask_b32 v17, v17, v3, vcc")
        e("v_lshlrev_b32 v17, 5, v17")
        e("v_lshl_add_u32 v%d, v7, 2, v17" % (10 + b))
    e("s_waitcnt vmcnt(5)")
    e("v_readfirstlane_b32 s38, v250")
    for i in range(4, -1, -1):
        e("v_and_b32 v%d, 0xffff0000, v%d" % (22 + 2 * i + 1, 20 + i))
        e("v_lshlrev_b32 v%d, 16, v%d" % (22 + 2 * i, 20 + i))
    e("s_cmp_eq_u32 s38, 0")
    e("s_cselect_b32 s38, s98, s38")
    e("s_cmp_eq_u32 s24, 0")
    e("s_cbranch_scc0 NO_NW")
    e("v_mov_b32 v250, s38")
    e("v_mov_b32 v251, 0")
    e("ds_write_b32 v251, v250 offset:%d" % LN)
    e("NO_NW:")
    layernorm(22, 10, 248, 36)
    e("v_mul_u32_u24 v17, 2560, v2")
    e("v_add_u32 v17, %d, v17" % LX)
    e("v_lshl_add_u32 v7, v1, 3, v17")
    for i in range(5):
        e("ds_write_b64 v7, v[%d:%d] offset:%d" % (22 + 2 * i, 23 + 2 * i, i * 512))
    e("s_lshl_b32 s39, s39, 2")
    e("v_lshl_add_u32 v17, v9, 2, v17")
    e("v_add_u32 v17, s39, v17")
    e("s_waitcnt lgkmcnt(0)")
    for n in range(5):
        e("ds_read_b32 v%d, v17 offset:%d" % (20 + n, n * 16))
    for i in range(8):
        e("v_mov_b32 v%d, 0" % (248 + i))
    e("s_waitcnt vmcnt(0) lgkmcnt(0)")
    stamp(1)
    for n in range(5):
        for d in range(4):
            e("v_lshlrev_b32 v30, 16, v%d" % (32 + 4 * n + d))
            e("v_and_b32 v31, 0xffff0000, v%d" % (32 + 4 * n + d))
            e("v_fmac_f32 v%d, v30, v%d" % (248 + 2 * d, 20 + n))
            e("v_fmac_f32 v%d, v31, v%d" % (249 + 2 * d, 20 + n))
    e("v_lshlrev_b32 v3, 5, v0")
    e("ds_write_b128 v3, v[248:251] offset:%d" % LQD)
    e("ds_write_b128 v3, v[252:255] offset:%d" % (LQD + 16))
    e("s_waitcnt lgkmcnt(0)")
    e("s_barrier")
    e("v_mov_b32 v251, 0")
    e("ds_read_b32 v250, v251 offset:%d" % LN)
    e("s_waitcnt lgkmcnt(0)")
    e("v_readfirstlane_b32 s38, v250")
    e("s_nop 3")
    e("s_mov_b32 s29, s28")
    e("s_mov_b32 s30, s28")
    e("s_cmp_ge_u32 s24, 3")
    e("s_cbranch_scc1 Q_OTHER")
    e("s_cmp_ge_u32 s24, 2")
    e("s_cbranch_scc1 Q_POLL")
    e("v_lshrrev_b32 v3, 3, v0")
    e("v_and_b32 v4, 7, v0")
    e("v_lshlrev_b32 v3, 5, v3")
    e("v_lshl_add_u32 v3, v4, 2, v3")
    for k in range(32):
        e("ds_read_b32 v%d, v3 offset:%d" % (32 + k, LQD + k * 512))
    e("s_waitcnt lgkmcnt(0)")
    for k in range(1, 32):
        e("v_add_f32 v32, v32, v%d" % (32 + k))
    e("v_mov_b32 v33, s38")
    e("s_lshl_b32 s27, s31, 10")
    e("s_add_u32 s27, s27, %d" % WS_QP)
    e("v_lshlrev_b32 v3, 3, v0")
    e("v_cmp_gt_u32 vcc, 96, v0")
    e("s_and_saveexec_b64 s[40:41], vcc")
    e("buffer_store_dwordx2 v[32:33], v3, s[20:23], s27 offen sc1")
    e("s_mov_b64 exec, s[40:41]")
    stamp(2)
    e("Q_POLL:")
    e("s_lshl_b32 s27, s25, 13")
    e("s_add_u32 s27, s27, %d" % WS_QP)
    e("v_cmp_le_u32 vcc, 96, v0")
    e("v_lshlrev_b32 v3, 3, v0")
    e("v_add_u32 v4, %d, v3" % (1024 - 768))
    e("s_nop 1")
    e("v_cndmask_b32 v3, v3, v4, vcc")
    e("s_add_u32 s33, s27, 4096")
    poll_begin("PQ")
    for kp in range(4):
        e("buffer_load_dwordx2 v[%d:%d], v3, s[20:23], %s offen offset:%d sc1" % (32 + 2 * kp, 33 + 2 * kp, "s27" if kp < 2 else "s33", (kp % 2) * 2048))
    e("s_waitcnt vmcnt(0)")
    e("v_cmp_ne_u32 vcc, s38, v33")
    for kp in range(1, 4):
        e("v_cmp_ne_u32 s[42:43], s38, v%d" % (33 + 2 * kp))
        e("s_or_b64 vcc, vcc, s[42:43]")
    poll_end("PQ")
    e("v_add_f32 v32, v32, v34")
    e("v_add_f32 v36, v36, v38")
    e("v_add_f32 v32, v32, v36")
    e("v_cvt_pk_bf16_f32 v32, v32, v32")
    e("v_lshlrev_b32 v4, 1, v0")
    e("ds_write_b16 v4, v32 offset:%d" % LQ)
    stamp(3)
    e("s_mov_b32 s37, 0")
    e("s_branch Q_DONE")
    e("Q_OTHER:")
    for i in range(PREK):
        k_load(i)
    e("s_mov_b32 s37, 1")
    e("Q_DONE:")
    e("s_waitcnt lgkmcnt(0)")
    e("s_barrier")
    stamp(4)
    e("v_lshrrev_b32 v3, 3, v0")
    e("v_mul_u32_u24 v3, %d, v3" % (72 * 32))
    e("v_and_b32 v4, 7, v0")
    e("v_lshl_add_u32 v3, v4, 5, v3")
    for i in range(4):
        e("v_mov_b32 v%d, 0" % (28 + i))
    e("v_cmp_gt_u32 vcc, 192, v0")
    e("s_and_saveexec_b64 s[40:41], vcc")
    e("ds_write_b128 v3, v[28:31] offset:%d" % (LA + 64 * 32))
    e("ds_write_b128 v3, v[28:31] offset:%d" % (LA + 64 * 32 + 16))
    e("s_mov_b64 exec, s[40:41]")
    e("v_lshlrev_b32 v4, 4, v9")
    for t in range(6):
        e("ds_read_b128 v[%d:%d], v4 offset:%d" % (QR + 4 * t, QR + 4 * t + 3, LQ + t * 64))
    if PREK:
        e("s_cmp_eq_u32 s37, 1")
        e("s_cbranch_scc1 K_REST")
        for i in range(PREK):
            k_load(i)
        e("K_REST:")
    for i in range(PREK, 24):
        k_load(i)
        if i >= DEPTH:
            e("s_waitcnt vmcnt(%d)" % DEPTH)
    for T in range(4):
        for i in range(4):
            e("v_mov_b32 v%d, 0" % (SRS[T] + i))
    e("s_waitcnt lgkmcnt(0)")
    nv = 0
    for i in range(24):
        T, t = i // 6, i % 6
        r = KR + i * 4
        e("s_waitcnt vmcnt(%d)" % (23 - i + nv))
        e("v_mfma_f32_16x16x32_bf16 v[%d:%d], v[%d:%d], v[%d:%d], v[%d:%d]" %
          (SRS[T], SRS[T] + 3, r, r + 3, QR + 4 * t, QR + 4 * t + 3, SRS[T], SRS[T] + 3))
        while nv < 24 and (23 - i + nv) < DEPTH:
            v_load(nv); nv += 1
    stamp(5)
    while nv < 24:
        v_load(nv); nv += 1
    e("s_cmp_ge_u32 s24, 6")
    e("s_cbranch_scc1 NO_WO")
    e("s_mul_i32 s27, s25, 192")
    e("s_mul_i32 s29, s26, 24")
    e("s_add_u32 s27, s27, s29")
    e("s_mul_i32 s27, s27, 1280")
    e("s_mul_i32 s29, s24, 5120")
    e("s_add_u32 s27, s27, s29")
    e("s_add_u32 s29, s29, %d" % LW)
    for i in range(5):
        e("s_mov_b32 m0, s29")
        e("s_nop 0")
        e("buffer_load_dwordx4 v6, s[52:55], s27 offen nt lds")
        e("s_add_u32 s27, s27, 1024")
        e("s_add_u32 s29, s29, 1024")
    e("s_mov_b32 s37, 5")
    e("s_branch WO_D")
    e("NO_WO:")
    e("s_mov_b32 s37, 0")
    e("WO_D:")
    SC = [SRS[T] + i for T in range(4) for i in range(4)]
    e("v_max3_f32 v252, v%d, v%d, v%d" % (SC[0], SC[1], SC[2]))
    for i in range(3, 16, 2):
        if i + 1 < 16:
            e("v_max3_f32 v252, v252, v%d, v%d" % (SC[i], SC[i + 1]))
        else:
            e("v_max_f32 v252, v252, v%d" % SC[i])
    e("s_nop 1")
    e("v_readlane_b32 s32, v252, 0")
    e("v_readlane_b32 s33, v252, 16")
    e("v_readlane_b32 s34, v252, 32")
    e("v_readlane_b32 s35, v252, 48")
    e("s_mov_b32 s36, %s" % C_SM)
    e("s_nop 3")
    e("v_mov_b32 v252, s32")
    e("v_max_f32 v252, s33, v252")
    e("v_max_f32 v252, s34, v252")
    e("v_max_f32 v252, s35, v252")
    e("v_mul_f32 v254, s36, v252")
    e("v_mov_b32 v253, 0")
    for i in range(16):
        e("v_fma_f32 v%d, v%d, s36, -v254" % (SC[i], SC[i]))
        e("v_exp_f32 v%d, v%d" % (SC[i], SC[i]))
        e("s_nop 0")
        e("v_add_f32 v253, v253, v%d" % SC[i])
    e("s_nop 1")
    e("v_readlane_b32 s32, v253, 0")
    e("v_readlane_b32 s33, v253, 16")
    e("v_readlane_b32 s34, v253, 32")
    e("v_readlane_b32 s35, v253, 48")
    e("s_nop 3")
    e("v_mov_b32 v253, s32")
    e("v_add_f32 v253, s33, v253")
    e("v_add_f32 v253, s34, v253")
    e("v_add_f32 v253, s35, v253")
    e("v_lshlrev_b32 v7, 8, v2")
    e("v_add_u32 v7, %d, v7" % LP)
    e("v_lshl_add_u32 v4, v9, 4, v7")
    for T in range(4):
        e("ds_write_b128 v4, v[%d:%d] offset:%d" % (SRS[T], SRS[T] + 3, T * 64))
    e("v_lshlrev_b32 v4, 3, v2")
    e("ds_write_b64 v4, v[252:253] offset:%d" % LM)
    e("s_waitcnt lgkmcnt(0)")
    for b in range(3):
        e("v_add_u32 v4, v7, v%d" % (13 + b))
        for a in range(0, 8, 2):
            e("ds_read2_b32 v[%d:%d], v4 offset0:%d offset1:%d" %
              (PR + b * 8 + a, PR + b * 8 + a + 1, a * 8, (a + 1) * 8))
    for i in range(24):
        e("v_mov_b32 v%d, 0" % (AR + i))
    e("s_waitcnt lgkmcnt(0)")
    e("s_cmp_eq_u32 s37, 0")
    e("s_cbranch_scc1 PV_B")
    for variant, extra in (("A", 5), ("B", 0)):
        if variant == "B":
            e("PV_B:")
        for n in range(24):
            a, b = n // 3, n % 3
            r = VR + n * 4
            e("s_waitcnt vmcnt(%d)" % (23 + extra - n))
            for d in range(4):
                e("v_lshlrev_b32 v3, 16, v%d" % (r + d))
                e("v_and_b32 v4, 0xffff0000, v%d" % (r + d))
                e("v_fmac_f32 v%d, v3, v%d" % (AR + b * 8 + 2 * d, PR + b * 8 + a))
                e("v_fmac_f32 v%d, v4, v%d" % (AR + b * 8 + 2 * d + 1, PR + b * 8 + a))
        if variant == "A":
            e("s_branch PV_D")
    e("PV_D:")
    stamp(6)
    for b in range(3):
        e("ds_write_b128 v5, v[%d:%d] offset:%d" % (AR + b * 8, AR + b * 8 + 3, LA + b * 72 * 32))
        e("ds_write_b128 v5, v[%d:%d] offset:%d" % (AR + b * 8 + 4, AR + b * 8 + 7, LA + b * 72 * 32 + 16))
    e("s_waitcnt vmcnt(0) lgkmcnt(0)")
    e("s_barrier")
    stamp(7)
    e("s_cmp_ge_u32 s24, 3")
    e("s_cbranch_scc1 GATE")
    e("v_mov_b32 v4, 0")
    for i in range(4):
        e("ds_read_b128 v[%d:%d], v4 offset:%d" % (32 + 4 * i, 35 + 4 * i, LM + 16 * i))
    e("s_waitcnt lgkmcnt(0)")
    e("v_max3_f32 v3, v32, v34, v36")
    e("v_max3_f32 v3, v3, v38, v40")
    e("v_max3_f32 v3, v3, v42, v44")
    e("v_max_f32 v3, v3, v46")
    e("v_mov_b32 v7, 0")
    for w in range(NW):
        e("v_sub_f32 v%d, v%d, v3" % (48 + w, 32 + 2 * w))
        e("v_mul_f32 v%d, s36, v%d" % (48 + w, 48 + w))
        e("v_exp_f32 v%d, v%d" % (48 + w, 48 + w))
        e("s_nop 0")
        e("v_fmac_f32 v7, v%d, v%d" % (48 + w, 33 + 2 * w))
    reduce_dump(60, 48, 80)
    e("v_mov_b32 v81, s38")
    e("s_lshl_b32 s27, s31, 11")
    e("s_add_u32 s27, s27, %d" % WS_P)
    e("v_lshlrev_b32 v4, 3, v0")
    e("buffer_store_dwordx2 v[80:81], v4, s[20:23], s27 offen sc1")
    e("v_mov_b32 v84, v3")
    e("v_mov_b32 v85, v7")
    e("v_mov_b32 v86, s38")
    e("v_mov_b32 v87, s38")
    e("v_cmp_eq_u32 vcc, 0, v0")
    e("s_and_saveexec_b64 s[40:41], vcc")
    e("buffer_store_dwordx4 v[84:87], v4, s[20:23], s27 offen offset:1536 sc1")
    e("s_mov_b64 exec, s[40:41]")
    stamp(8)
    e("s_cmp_eq_u32 s24, 0")
    e("s_cbranch_scc0 HOP1_D")
    e("s_lshl_b32 s27, s25, 14")
    e("s_add_u32 s27, s27, %d" % WS_P)
    e("s_mul_i32 s29, s26, 192")
    e("v_min_u32 v3, 23, v1")
    e("v_lshlrev_b32 v3, 3, v3")
    e("v_add_u32 v3, s29, v3")
    e("v_mov_b32 v4, 1536")
    e("s_add_u32 s32, s27, 4096")
    e("s_add_u32 s33, s27, 8192")
    e("s_add_u32 s34, s27, 12288")
    poll_begin("PO")
    for s_ in range(NSPLIT):
        sb = ["s27", "s32", "s33", "s34"][s_ // 2]
        e("buffer_load_dwordx2 v[%d:%d], v3, s[20:23], %s offen offset:%d sc1" % (64 + 2 * s_, 65 + 2 * s_, sb, (s_ % 2) * 2048))
        e("buffer_load_dwordx4 v[%d:%d], v4, s[20:23], %s offen offset:%d sc1" % (80 + 4 * s_, 83 + 4 * s_, sb, (s_ % 2) * 2048))
    e("s_waitcnt vmcnt(0)")
    e("v_cmp_ne_u32 vcc, s38, v65")
    for s_ in range(NSPLIT):
        if s_ > 0:
            e("v_cmp_ne_u32 s[42:43], s38, v%d" % (65 + 2 * s_))
            e("s_or_b64 vcc, vcc, s[42:43]")
        e("v_cmp_ne_u32 s[42:43], s38, v%d" % (82 + 4 * s_))
        e("s_or_b64 vcc, vcc, s[42:43]")
    poll_end("PO")
    stamp(9)
    e("v_mov_b32 v3, v80")
    for s_ in range(1, NSPLIT):
        e("v_max_f32 v3, v3, v%d" % (80 + 4 * s_))
    e("v_mov_b32 v8, 0")
    e("v_mov_b32 v9, 0")
    for s_ in range(NSPLIT):
        e("v_sub_f32 v10, v%d, v3" % (80 + 4 * s_))
        e("v_mul_f32 v10, s36, v10")
        e("v_exp_f32 v10, v10")
        e("s_nop 0")
        e("v_fmac_f32 v8, v10, v%d" % (64 + 2 * s_))
        e("v_fmac_f32 v9, v10, v%d" % (81 + 4 * s_))
    e("v_rcp_f32 v9, v9")
    e("s_nop 0")
    e("v_mul_f32 v8, v8, v9")
    rbf(8, 10)
    e("v_lshlrev_b32 v3, 2, v1")
    e("ds_write_b32 v3, v8 offset:%d" % LO)
    e("s_waitcnt lgkmcnt(0)")
    e("s_branch HOP1_D")
    e("GATE:")
    e("s_cmp_ge_u32 s24, 6")
    e("s_cbranch_scc1 HOP1_D")
    e("s_sub_u32 s33, s24, 3")
    e("s_lshl_b32 s33, s33, 8")
    e("s_add_u32 s33, s33, s2")
    e("s_cmp_ge_u32 s33, 640")
    e("s_cbranch_scc1 HOP1_D")
    srd(80, 64, 65, 3072)
    srd(84, 66, 67, 3072)
    srd(88, 68, 69, 3072)
    srd(92, 70, 71, 2)
    e("v_lshlrev_b32 v8, 4, v1")
    for j in range(3):
        e("buffer_load_dwordx4 v[%d:%d], v8, s[80:83], 0 offen offset:%d" % (140 + 4 * j, 143 + 4 * j, j * 1024))
        e("buffer_load_dwordx4 v[%d:%d], v8, s[84:87], 0 offen offset:%d" % (152 + 4 * j, 155 + 4 * j, j * 1024))
        e("buffer_load_dwordx4 v[%d:%d], v8, s[88:91], 0 offen offset:%d" % (164 + 4 * j, 167 + 4 * j, j * 1024))
    e("v_mov_b32 v9, 0")
    e("buffer_load_ushort v176, v9, s[92:95], 0 offen")
    e("v_mul_u32_u24 v6, 2560, v2")
    e("v_add_u32 v6, %d, v6" % LX)
    e("v_lshl_add_u32 v7, v1, 3, v6")
    for i in range(5):
        e("ds_read_b64 v[%d:%d], v7 offset:%d" % (20 + 2 * i, 21 + 2 * i, i * 512))
    e("s_waitcnt lgkmcnt(0)")
    layernorm(20, 10, 30, 40)
    for i in range(5):
        e("ds_write_b64 v7, v[%d:%d] offset:%d" % (20 + 2 * i, 21 + 2 * i, i * 512))
    e("v_mov_b32 v9, s33")
    e("v_lshl_add_u32 v10, v9, 2, v6")
    e("s_waitcnt lgkmcnt(0)")
    e("ds_read_b32 v11, v10")
    e("v_mov_b32 v12, 0")
    e("s_mov_b32 s34, 0x3d372713")
    e("s_mov_b32 s35, %s" % C_GELU)
    e("s_waitcnt vmcnt(0) lgkmcnt(0)")
    for j in range(3):
        for d in range(4):
            for half in range(2):
                op = "v_lshlrev_b32 v%d, 16, v%d" if half == 0 else "v_and_b32 v%d, 0xffff0000, v%d"
                e(op % (13, 140 + 4 * j + d))
                e(op % (14, 152 + 4 * j + d))
                e(op % (15, 164 + 4 * j + d))
                e("v_mul_f32 v13, v13, v11")
                rbf(13, 16)
                e("v_add_f32 v13, v13, v14")
                rbf(13, 16)
                e("v_mul_f32 v16, v13, v13")
                e("v_mul_f32 v16, s34, v16")
                e("v_fma_f32 v16, v16, v13, v13")
                e("v_mul_f32 v16, s35, v16")
                e("v_exp_f32 v16, v16")
                e("s_nop 0")
                e("v_add_f32 v16, 1.0, v16")
                e("v_rcp_f32 v16, v16")
                e("s_nop 0")
                e("v_mul_f32 v13, v13, v16")
                rbf(13, 16)
                e("v_fmac_f32 v12, v13, v15")
    wave_sum(12, 37)
    e("v_mov_b32 v12, s37")
    rbf(12, 16)
    e("v_lshlrev_b32 v176, 16, v176")
    e("v_add_f32 v12, v12, v176")
    rbf(12, 16)
    e("v_mul_f32 v13, 0xbfb8aa3b, v12")
    e("v_exp_f32 v13, v13")
    e("s_nop 0")
    e("v_add_f32 v13, 1.0, v13")
    e("v_rcp_f32 v13, v13")
    e("s_nop 0")
    e("v_mul_f32 v12, v12, v13")
    rbf(12, 16)
    e("v_mov_b32 v13, s38")
    e("v_lshlrev_b32 v9, 3, v9")
    e("s_mov_b32 s27, %d" % WS_G)
    e("v_cmp_eq_u32 vcc, 0, v1")
    e("s_and_saveexec_b64 s[40:41], vcc")
    e("buffer_store_dwordx2 v[12:13], v9, s[20:23], s27 offen sc1")
    e("s_mov_b64 exec, s[40:41]")
    e("HOP1_D:")
    e("s_barrier")
    stamp(10)
    e("v_mul_u32_u24 v3, 52429, v0")
    e("v_lshrrev_b32 v3, 22, v3")
    e("v_mul_u32_u24 v4, 80, v3")
    e("v_sub_u32 v4, v0, v4")
    e("v_cmp_gt_u32 vcc, 480, v0")
    e("s_and_saveexec_b64 s[40:41], vcc")
    e("s_cbranch_execz GEMV_D")
    e("v_mul_u32_u24 v5, 5120, v3")
    e("v_lshl_add_u32 v5, v4, 4, v5")
    e("v_add_u32 v5, %d, v5" % LW)
    e("v_lshlrev_b32 v6, 4, v3")
    e("ds_read_b128 v[20:23], v6 offset:%d" % LO)
    for i in range(4):
        e("ds_read_b128 v[%d:%d], v5 offset:%d" % (32 + 4 * i, 35 + 4 * i, i * 1280))
    for c in range(8):
        e("v_mov_b32 v%d, 0" % (48 + c))
    e("s_waitcnt lgkmcnt(0)")
    for i in range(4):
        for d in range(4):
            e("v_lshlrev_b32 v7, 16, v%d" % (32 + 4 * i + d))
            e("v_and_b32 v8, 0xffff0000, v%d" % (32 + 4 * i + d))
            e("v_fmac_f32 v%d, v7, v%d" % (48 + 2 * d, 20 + i))
            e("v_fmac_f32 v%d, v8, v%d" % (49 + 2 * d, 20 + i))
    e("v_mul_u32_u24 v5, 2560, v3")
    e("v_lshl_add_u32 v5, v4, 5, v5")
    e("ds_write_b128 v5, v[48:51] offset:%d" % LF)
    e("ds_write_b128 v5, v[52:55] offset:%d" % (LF + 16))
    e("GEMV_D:")
    e("s_mov_b64 exec, s[40:41]")
    e("s_waitcnt lgkmcnt(0)")
    e("s_barrier")
    e("v_lshlrev_b32 v3, 2, v0")
    for r in range(6):
        e("ds_read_b32 v%d, v3 offset:%d" % (20 + r, LF + r * 2560))
    e("v_cmp_gt_u32 vcc, 128, v0")
    e("s_and_saveexec_b64 s[40:41], vcc")
    for r in range(6):
        e("ds_read_b32 v%d, v3 offset:%d" % (30 + r, LF + r * 2560 + 2048))
    e("s_mov_b64 exec, s[40:41]")
    e("s_waitcnt lgkmcnt(0)")
    for r in range(1, 6):
        e("v_add_f32 v20, v20, v%d" % (20 + r))
        e("v_add_f32 v30, v30, v%d" % (30 + r))
    e("v_mov_b32 v21, s38")
    e("v_mov_b32 v31, s38")
    e("s_mul_i32 s27, s2, 5120")
    e("s_add_u32 s27, s27, %d" % WS_F)
    e("v_lshlrev_b32 v3, 3, v0")
    e("buffer_store_dwordx2 v[20:21], v3, s[20:23], s27 offen sc1")
    e("s_add_u32 s27, s27, 4096")
    e("s_and_saveexec_b64 s[40:41], vcc")
    e("buffer_store_dwordx2 v[30:31], v3, s[20:23], s27 offen sc1")
    e("s_mov_b64 exec, s[40:41]")
    stamp(11)
    e("s_cmp_ge_u32 s2, 40")
    e("s_cbranch_scc1 K_END")
    e("v_lshrrev_b32 v3, 3, v1")
    e("v_lshl_add_u32 v3, v2, 5, v3")
    e("v_and_b32 v4, 7, v3")
    e("v_lshlrev_b32 v4, 4, v4")
    e("v_mul_u32_u24 v3, 5120, v3")
    e("v_and_b32 v5, 7, v1")
    e("v_lshl_add_u32 v3, v5, 4, v3")
    e("s_lshl_b32 s27, s2, 7")
    e("s_add_u32 s27, s27, %d" % WS_F)
    e("s_add_u32 s29, s27, %d" % (16 * 5120))
    poll_begin("PF")
    e("buffer_load_dwordx4 v[40:43], v4, s[56:59], 0 offen offset:128 sc1")
    for k in range(4):
        sb = "s27" if k < 2 else "s29"
        e("buffer_load_dwordx4 v[%d:%d], v3, s[20:23], %s offen offset:%d sc1" % (20 + 4 * k, 23 + 4 * k, sb, 0))
        if k % 2 == 0:
            e("s_add_u32 %s, %s, %d" % (sb, sb, 8 * 5120))
    e("s_sub_u32 s27, s27, %d" % (8 * 5120))
    e("s_sub_u32 s29, s29, %d" % (8 * 5120))
    e("s_waitcnt vmcnt(0)")
    e("v_cmp_eq_u32 vcc, 0, v40")
    for k in range(4):
        if k > 0:
            e("v_cmp_eq_u32 s[42:43], 0, v%d" % (40 + k))
            e("s_or_b64 vcc, vcc, s[42:43]")
        e("v_cmp_ne_u32 s[42:43], v%d, v%d" % (40 + k, 21 + 4 * k))
        e("s_or_b64 vcc, vcc, s[42:43]")
        e("v_cmp_ne_u32 s[42:43], v%d, v%d" % (40 + k, 23 + 4 * k))
        e("s_or_b64 vcc, vcc, s[42:43]")
    poll_end("PF")
    stamp(12)
    for k in range(1, 4):
        e("v_add_f32 v20, v20, v%d" % (20 + 4 * k))
        e("v_add_f32 v22, v22, v%d" % (22 + 4 * k))
    e("v_mov_b32 v21, v22")
    e("v_lshlrev_b32 v5, 3, v0")
    e("ds_write_b64 v5, v[20:21] offset:%d" % LR)
    e("s_waitcnt lgkmcnt(0)")
    e("s_barrier")
    e("s_cmp_eq_u32 s24, 0")
    e("s_cbranch_scc0 K_END")
    e("v_and_b32 v3, 15, v1")
    e("v_lshrrev_b32 v4, 4, v1")
    e("v_lshlrev_b32 v5, 10, v4")
    e("v_lshl_add_u32 v5, v3, 2, v5")
    for k in range(16):
        e("ds_read_b32 v%d, v5 offset:%d" % (32 + k, LR + k * 64))
    e("s_lshl_b32 s27, s2, 5")
    e("v_lshlrev_b32 v7, 1, v3")
    e("buffer_load_ushort v9, v7, s[44:47], s27 offen")
    e("s_lshl_b32 s29, s2, 4")
    e("v_add_u32 v10, s29, v3")
    e("v_and_b32 v11, 7, v10")
    e("v_lshlrev_b32 v11, 4, v11")
    e("v_lshrrev_b32 v12, 3, v10")
    e("v_and_b32 v12, 3, v12")
    e("v_lshl_add_u32 v11, v12, 2, v11")
    e("v_lshlrev_b32 v10, 3, v10")
    e("s_mov_b32 s29, %d" % WS_G)
    poll_begin("PG")
    e("buffer_load_dword v14, v11, s[56:59], 0 offen offset:128 sc1")
    e("buffer_load_dwordx2 v[12:13], v10, s[20:23], s29 offen sc1")
    e("s_waitcnt vmcnt(0)")
    e("v_cmp_eq_u32 vcc, 0, v14")
    e("v_cmp_ne_u32 s[42:43], v14, v13")
    e("s_or_b64 vcc, vcc, s[42:43]")
    poll_end("PG")
    e("s_waitcnt lgkmcnt(0)")
    for k in range(1, 16):
        e("v_add_f32 v32, v32, v%d" % (32 + k))
    e("v_lshlrev_b32 v5, 2, v1")
    e("ds_write_b32 v5, v32 offset:%d" % (LR + 8192))
    e("v_lshlrev_b32 v6, 2, v3")
    e("s_waitcnt lgkmcnt(0)")
    for k in range(4):
        e("ds_read_b32 v%d, v6 offset:%d" % (40 + k, LR + 8192 + k * 64))
    e("s_waitcnt lgkmcnt(0)")
    e("v_add_f32 v40, v40, v41")
    e("v_add_f32 v42, v42, v43")
    e("v_add_f32 v40, v40, v42")
    rbf(40, 10)
    e("v_mul_f32 v40, v40, v12")
    rbf(40, 10)
    e("v_lshlrev_b32 v9, 16, v9")
    e("v_add_f32 v40, v40, v9")
    e("v_cvt_pk_bf16_f32 v40, v40, v40")
    srd(92, 76, 77, 1280)
    e("v_cmp_gt_u32 vcc, 16, v1")
    e("s_and_saveexec_b64 s[40:41], vcc")
    e("buffer_store_short v40, v7, s[92:95], s27 offen")
    stamp(13)
    e("K_END:")
    e("s_endpgm")

e(HEADER.rstrip())
e("; @launch grid=(%d,1,1) block=(512,1,1) lds=%d" % (A_WG, A_LDS))
e('.amdgcn_target "amdgcn-amd-amdhsa--gfx950"')
e(".text")
gen_main()
e('.section .rodata,"a"')
descriptor(NAME + "_kernel", 256)
open(OUT, "w").write("\n".join(L) + "\n")
```

```python
import sys, struct, math, os
LATE = int(os.environ.get('LATE','0'))

NAME = "recurrent_scan__sliding_block_cached__mixer_token_mlp__decode"
OUT = sys.argv[1] if len(sys.argv) > 1 else "cdna_kernels/%s.s" % NAME
HEADER = open("cdna_kernels/%s.s.ref" % NAME).read().split("; Override launch")[0]

WS_QP = 0
WS_G = 0x40000
WS_P = 0x80000
WS_F = 0x100000
WS_T = 0x280000
WS_BYTES = 0x300000
NSPLIT = 8

L = []
import re
def e(s=""):
    if s.startswith("buffer_"):
        m = re.search(r"offset:(\d+)", s)
        assert not m or int(m.group(1)) < 4096, s
    L.append(s)
def fhex(x):
    return "0x%08x" % struct.unpack("<I", struct.pack("<f", x))[0]
C_SM = fhex(math.log2(math.e) / math.sqrt(192.0))
C_GELU = fhex(-2.0 * math.sqrt(2.0 / math.pi) * math.log2(math.e))

def kernel_begin(name):
    e(".globl %s" % name)
    e(".p2align 8")
    e(".type %s,@function" % name)
    e("%s:" % name)

def srd(d, lo, hi, nbytes):
    e("s_mov_b32 s%d, s%d" % (d, lo))
    e("s_and_b32 s%d, s%d, 0xffff" % (d + 1, hi))
    e("s_mov_b32 s%d, 0x%x" % (d + 2, nbytes))
    e("s_mov_b32 s%d, 0x00020000" % (d + 3))

def wave_sum(v, tmp_s):
    e("s_nop 1")
    e("v_add_f32_dpp v%d, v%d, v%d quad_perm:[1,0,3,2] row_mask:0xf bank_mask:0xf" % (v, v, v))
    e("s_nop 1")
    e("v_add_f32_dpp v%d, v%d, v%d quad_perm:[2,3,0,1] row_mask:0xf bank_mask:0xf" % (v, v, v))
    e("s_nop 1")
    e("v_add_f32_dpp v%d, v%d, v%d row_half_mirror row_mask:0xf bank_mask:0xf" % (v, v, v))
    e("s_nop 1")
    e("v_add_f32_dpp v%d, v%d, v%d row_mirror row_mask:0xf bank_mask:0xf" % (v, v, v))
    e("s_nop 1")
    e("v_add_f32_dpp v%d, v%d, v%d row_bcast:15 row_mask:0xa bank_mask:0xf" % (v, v, v))
    e("s_nop 1")
    e("v_add_f32_dpp v%d, v%d, v%d row_bcast:31 row_mask:0xc bank_mask:0xf" % (v, v, v))
    e("s_nop 1")
    e("v_readlane_b32 s%d, v%d, 63" % (tmp_s, v))
    e("s_nop 3")

def rbf(v, tmp):
    e("v_cvt_pk_bf16_f32 v%d, v%d, v%d" % (tmp, v, v))
    e("v_lshlrev_b32 v%d, 16, v%d" % (v, tmp))

def layernorm(xv, n, t0, s0):
    e("v_mov_b32 v%d, v%d" % (t0, xv))
    for i in range(1, n):
        e("v_add_f32 v%d, v%d, v%d" % (t0, t0, xv + i))
    wave_sum(t0, s0)
    e("v_mov_b32 v%d, s%d" % (t0, s0))
    e("v_mul_f32 v%d, 0x3acccccd, v%d" % (t0, t0))
    e("v_mov_b32 v%d, 0" % (t0 + 1))
    for i in range(n):
        e("v_sub_f32 v%d, v%d, v%d" % (t0 + 2, xv + i, t0))
        e("v_fmac_f32 v%d, v%d, v%d" % (t0 + 1, t0 + 2, t0 + 2))
    wave_sum(t0 + 1, s0 + 1)
    e("v_mov_b32 v%d, s%d" % (t0 + 1, s0 + 1))
    e("v_mul_f32 v%d, 0x3acccccd, v%d" % (t0 + 1, t0 + 1))
    rbf(t0 + 1, t0 + 2)
    e("v_add_f32 v%d, 0x3727c5ac, v%d" % (t0 + 1, t0 + 1))
    rbf(t0 + 1, t0 + 2)
    e("v_sqrt_f32 v%d, v%d" % (t0 + 1, t0 + 1))
    e("s_nop 0")
    rbf(t0 + 1, t0 + 2)
    e("v_rcp_f32 v%d, v%d" % (t0 + 1, t0 + 1))
    e("s_nop 0")
    rbf(t0, t0 + 2)
    for i in range(n):
        e("v_sub_f32 v%d, v%d, v%d" % (xv + i, xv + i, t0))
        rbf(xv + i, t0 + 2)
        e("v_mul_f32 v%d, v%d, v%d" % (xv + i, xv + i, t0 + 1))
        rbf(xv + i, t0 + 2)

def descriptor(name, vgpr, sgpr=102):
    acc = (vgpr + 3) // 4 * 4
    e(".p2align 6")
    e(".amdhsa_kernel %s" % name)
    e("  .amdhsa_next_free_vgpr %d" % vgpr)
    e("  .amdhsa_next_free_sgpr %d" % sgpr)
    e("  .amdhsa_accum_offset %d" % acc)
    e("  .amdhsa_group_segment_fixed_size 0")
    e("  .amdhsa_kernarg_size 104")
    e("  .amdhsa_user_sgpr_count 2")
    e("  .amdhsa_user_sgpr_kernarg_segment_ptr 1")
    e("  .amdhsa_system_sgpr_workgroup_id_x 1")
    e(".end_amdhsa_kernel")


A_WG = 256
HEAD_STRIDE = 32768 * 384
KV_BYTES = 32 * HEAD_STRIDE
WIN0 = (32768 - 4096)
NW = 8
LA = 0
LQ = LA + NW * 3 * 72 * 32
LM = LQ + 512
LN = LM + 64
LP = LN + 64
LO = LP + NW * 256
LX = LO + 1024
LW = LX + 8 * 2560
A_LDS = LW + 30720
LF = 0
LR = 16384
LQD = 32768

VR = 32
QR = 128
KR = 152
PR = 152
AR = 176
SRS = [20, 24, 28, 248]
POLL_LIMIT = 1 << 16
DEPTH = int(os.environ.get("DEPTH", "10"))
PREK = int(os.environ.get("PREK", "0"))
STAMP = int(os.environ.get("STAMP", "0"))

DBGT = int(os.environ.get("DBGT", "0"))
def stamp(i):
    if DBGT:
        lab = "DT%d" % i
        e("s_or_b32 s62, s2, s24")
        e("s_cmp_eq_u32 s62, 0")
        e("s_cbranch_scc0 %s" % lab)
        e("s_memrealtime s[100:101]")
        e("s_waitcnt lgkmcnt(0)")
        e("s_sub_u32 s100, s100, s99")
        e("v_mov_b32 v19, s100")
        e("s_mov_b32 s62, %d" % (i * 4))
        e("buffer_store_dword v19, off, s[56:59], s62")
        e("%s:" % lab)
        return
    if not STAMP: return
    e("s_memrealtime s[100:101]")
    e("s_waitcnt lgkmcnt(0)")
    e("v_mov_b32 v19, s100")
    e("s_lshl_b32 s62, s2, 9")
    e("s_lshl_b32 s63, s24, 6")
    e("s_add_u32 s62, s62, s63")
    e("s_add_u32 s62, s62, %d" % (WS_T + i * 4))
    e("buffer_store_dword v19, off, s[20:23], s62")

def reduce_dump(RR, scale_regs, dst):
    e("v_mov_b32 v%d, 0" % dst)
    def fin(w):
        pb = RR + (w % 2) * 9
        for k in range(1, 9):
            e("v_add_f32 v%d, v%d, v%d" % (pb, pb, pb + k))
        e("v_fmac_f32 v%d, v%d, v%d" % (dst, scale_regs + w, pb))
    for w in range(NW):
        base = RR + (w % 2) * 9
        for b in range(3):
            for k in range(3):
                e("ds_read_b32 v%d, v%d offset:%d" % (base + b * 3 + k, 10 + b,
                                                    LA + (w * 3 + b) * 72 * 32 + k * 24 * 32))
        if w > 0:
            e("s_waitcnt lgkmcnt(9)")
            fin(w - 1)
    e("s_waitcnt lgkmcnt(0)")
    fin(NW - 1)

def poll_begin(label):
    e("s_mov_b32 s60, 0")
    e("%s:" % label)

def poll_end(label):
    e("s_cbranch_vccz %s_D" % label)
    e("s_sleep 1")
    e("s_add_u32 s60, s60, 1")
    e("s_cmp_lt_u32 s60, %d" % POLL_LIMIT)
    e("s_cbranch_scc1 %s" % label)
    e("%s_D:" % label)

def k_load(i):
    T, t = i // 6, i % 6
    r = KR + i * 4
    if t == 0 and T > 0:
        e("s_add_u32 s29, s29, 6144")
    e("buffer_load_dwordx4 v[%d:%d], v8, s[12:15], s29 offen offset:%d nt" % (r, r + 3, t * 64))

def v_load(n):
    r = VR + n * 4
    if n % 4 == 0 and n > 0:
        e("s_add_u32 s30, s30, 4096")
    e("buffer_load_dwordx4 v[%d:%d], v6, s[16:19], s30 offen offset:%d nt" % (r, r + 3, (n % 4) * 1024))

def gen_main():
    kernel_begin(NAME + "_kernel")
    e("s_cmp_ge_u32 s2, %d" % A_WG)
    e("s_cbranch_scc1 K_END")
    e("s_load_dwordx8 s[4:11], s[0:1], 0")
    e("s_load_dwordx2 s[74:75], s[0:1], 32")
    e("s_load_dwordx8 s[64:71], s[0:1], 48")
    e("s_load_dwordx4 s[76:79], s[0:1], 80")
    e("s_load_dwordx2 s[72:73], s[0:1], 96")
    e("s_memrealtime s[98:99]")
    e("v_and_b32 v1, 63, v0")
    e("v_lshrrev_b32 v2, 6, v0")
    e("s_nop 0")
    e("v_readfirstlane_b32 s24, v2")
    e("s_and_b32 s25, s2, 7")
    e("s_lshl_b32 s25, s25, 2")
    e("s_lshr_b32 s26, s2, 3")
    e("s_and_b32 s26, s26, 3")
    e("s_or_b32 s25, s25, s26")
    e("s_lshr_b32 s26, s2, 5")
    e("s_lshl_b32 s31, s25, 3")
    e("s_add_u32 s31, s31, s26")
    e("s_waitcnt lgkmcnt(0)")
    srd(44, 4, 5, 1280)
    srd(12, 6, 7, KV_BYTES)
    srd(16, 8, 9, KV_BYTES)
    srd(48, 10, 11, 640 * 6144 * 2)
    srd(20, 72, 73, WS_BYTES)
    srd(52, 74, 75, 6144 * 640 * 2)
    srd(56, 78, 79, 256)
    e("s_mov_b32 s99, s98")
    e("s_or_b32 s98, s98, 1")
    e("v_mov_b32 v250, s98")
    e("v_mov_b32 v251, 0")
    e("s_lshl_b32 s27, s25, 2")
    e("s_add_u32 s27, s27, 128")
    e("v_cmp_eq_u32 vcc, 0, v0")
    e("s_and_saveexec_b64 s[40:41], vcc")
    e("s_cbranch_execz NO_CAS")
    e("buffer_atomic_cmpswap v[250:251], off, s[56:59], s27 sc0")
    e("NO_CAS:")
    e("s_mov_b64 exec, s[40:41]")
    e("v_lshlrev_b32 v3, 2, v1")
    for i in range(5):
        e("buffer_load_dword v%d, v3, s[44:47], 0 offen offset:%d" % (20 + i, i * 256))
    e("v_lshrrev_b32 v9, 4, v1")
    e("v_and_b32 v4, 15, v1")
    e("v_mul_u32_u24 v16, 12288, v9")
    e("v_lshl_add_u32 v16, v4, 4, v16")
    e("s_lshr_b32 s27, s26, 1")
    e("s_mul_i32 s27, s27, 160")
    e("s_mul_i32 s30, s24, 20")
    e("s_add_u32 s27, s27, s30")
    e("s_mov_b32 s39, s27")
    e("s_mul_i32 s27, s27, 12288")
    e("s_mul_i32 s30, s25, 384")
    e("s_add_u32 s27, s27, s30")
    e("s_and_b32 s30, s26, 1")
    e("s_mul_i32 s30, s30, 192")
    e("s_add_u32 s27, s27, s30")
    e("v_cmp_gt_u32 vcc, 12, v4")
    e("s_and_saveexec_b64 s[40:41], vcc")
    for n in range(5):
        e("buffer_load_dwordx4 v[%d:%d], v16, s[48:51], s27 offen nt" % (32 + 4 * n, 35 + 4 * n))
        if n < 4:
            e("s_add_u32 s27, s27, %d" % (4 * 12288))
    e("s_mov_b64 exec, s[40:41]")
    stamp(0)
    for b in range(3):
        e("v_add_u32 v5, %d, v1" % (64 * b))
        e("v_mul_u32_u24 v6, 2731, v5")
        e("v_lshrrev_b32 v4, 16, v6")
        e("v_lshlrev_b32 v%d, 2, v4" % (13 + b))
    e("s_mul_i32 s28, s25, %d" % HEAD_STRIDE)
    e("s_lshl_b32 s29, s26, 9")
    e("s_lshl_b32 s30, s24, 6")
    e("s_add_u32 s29, s29, s30")
    e("s_add_u32 s29, s29, %d" % WIN0)
    e("s_mul_i32 s29, s29, 384")
    e("s_add_u32 s28, s28, s29")
    e("v_and_b32 v8, 15, v1")
    e("v_mul_u32_u24 v8, 384, v8")
    e("v_lshl_add_u32 v8, v9, 4, v8")
    e("v_mul_u32_u24 v5, %d, v2" % (3 * 72 * 32))
    e("v_lshl_add_u32 v5, v1, 5, v5")
    e("v_lshlrev_b32 v6, 4, v1")
    e("v_lshrrev_b32 v4, 3, v0")
    e("v_and_b32 v7, 7, v0")
    for b in range(3):
        e("v_add_u32 v17, %d, v4" % (8 * b))
        e("v_subrev_u32 v3, 24, v17")
        e("v_cmp_le_u32 vcc, 24, v17")
        e("s_nop 1")
        e("v_cndmask_b32 v17, v17, v3, vcc")
        e("v_lshlrev_b32 v17, 5, v17")
        e("v_lshl_add_u32 v%d, v7, 2, v17" % (10 + b))
    e("s_waitcnt vmcnt(5)")
    e("v_readfirstlane_b32 s38, v250")
    for i in range(4, -1, -1):
        e("v_and_b32 v%d, 0xffff0000, v%d" % (22 + 2 * i + 1, 20 + i))
        e("v_lshlrev_b32 v%d, 16, v%d" % (22 + 2 * i, 20 + i))
    e("s_cmp_eq_u32 s38, 0")
    e("s_cselect_b32 s38, s98, s38")
    e("s_cmp_eq_u32 s24, 0")
    e("s_cbranch_scc0 NO_NW")
    e("v_mov_b32 v250, s38")
    e("v_mov_b32 v251, 0")
    e("ds_write_b32 v251, v250 offset:%d" % LN)
    e("NO_NW:")
    layernorm(22, 10, 248, 36)
    e("v_mul_u32_u24 v17, 2560, v2")
    e("v_add_u32 v17, %d, v17" % LX)
    e("v_lshl_add_u32 v7, v1, 3, v17")
    for i in range(5):
        e("ds_write_b64 v7, v[%d:%d] offset:%d" % (22 + 2 * i, 23 + 2 * i, i * 512))
    e("s_lshl_b32 s39, s39, 2")
    e("v_lshl_add_u32 v17, v9, 2, v17")
    e("v_add_u32 v17, s39, v17")
    e("s_waitcnt lgkmcnt(0)")
    for n in range(5):
        e("ds_read_b32 v%d, v17 offset:%d" % (20 + n, n * 16))
    for i in range(8):
        e("v_mov_b32 v%d, 0" % (248 + i))
    e("s_waitcnt vmcnt(0) lgkmcnt(0)")
    stamp(1)
    for n in range(5):
        for d in range(4):
            e("v_lshlrev_b32 v30, 16, v%d" % (32 + 4 * n + d))
            e("v_and_b32 v31, 0xffff0000, v%d" % (32 + 4 * n + d))
            e("v_fmac_f32 v%d, v30, v%d" % (248 + 2 * d, 20 + n))
            e("v_fmac_f32 v%d, v31, v%d" % (249 + 2 * d, 20 + n))
    e("v_lshlrev_b32 v3, 5, v0")
    e("ds_write_b128 v3, v[248:251] offset:%d" % LQD)
    e("ds_write_b128 v3, v[252:255] offset:%d" % (LQD + 16))
    e("s_waitcnt lgkmcnt(0)")
    e("s_barrier")
    e("v_mov_b32 v251, 0")
    e("ds_read_b32 v250, v251 offset:%d" % LN)
    e("s_waitcnt lgkmcnt(0)")
    e("v_readfirstlane_b32 s38, v250")
    e("s_nop 3")
    e("s_mov_b32 s29, s28")
    e("s_mov_b32 s30, s28")
    e("s_cmp_ge_u32 s24, 3")
    e("s_cbranch_scc1 Q_OTHER")
    e("s_cmp_ge_u32 s24, 2")
    e("s_cbranch_scc1 Q_POLL")
    e("v_lshrrev_b32 v3, 3, v0")
    e("v_and_b32 v4, 7, v0")
    e("v_lshlrev_b32 v3, 5, v3")
    e("v_lshl_add_u32 v3, v4, 2, v3")
    for k in range(32):
        e("ds_read_b32 v%d, v3 offset:%d" % (32 + k, LQD + k * 512))
    e("s_waitcnt lgkmcnt(0)")
    for k in range(1, 32):
        e("v_add_f32 v32, v32, v%d" % (32 + k))
    e("v_mov_b32 v33, s38")
    e("s_lshl_b32 s27, s31, 10")
    e("s_add_u32 s27, s27, %d" % WS_QP)
    e("v_lshlrev_b32 v3, 3, v0")
    e("v_cmp_gt_u32 vcc, 96, v0")
    e("s_and_saveexec_b64 s[40:41], vcc")
    e("buffer_store_dwordx2 v[32:33], v3, s[20:23], s27 offen sc1")
    e("s_mov_b64 exec, s[40:41]")
    stamp(2)
    e("Q_POLL:")
    e("s_lshl_b32 s27, s25, 13")
    e("s_add_u32 s27, s27, %d" % WS_QP)
    e("v_cmp_le_u32 vcc, 96, v0")
    e("v_lshlrev_b32 v3, 3, v0")
    e("v_add_u32 v4, %d, v3" % (1024 - 768))
    e("s_nop 1")
    e("v_cndmask_b32 v3, v3, v4, vcc")
    e("s_add_u32 s33, s27, 4096")
    poll_begin("PQ")
    for kp in range(4):
        e("buffer_load_dwordx2 v[%d:%d], v3, s[20:23], %s offen offset:%d sc1" % (32 + 2 * kp, 33 + 2 * kp, "s27" if kp < 2 else "s33", (kp % 2) * 2048))
    e("s_waitcnt vmcnt(0)")
    e("v_cmp_ne_u32 vcc, s38, v33")
    for kp in range(1, 4):
        e("v_cmp_ne_u32 s[42:43], s38, v%d" % (33 + 2 * kp))
        e("s_or_b64 vcc, vcc, s[42:43]")
    poll_end("PQ")
    e("v_add_f32 v32, v32, v34")
    e("v_add_f32 v36, v36, v38")
    e("v_add_f32 v32, v32, v36")
    e("v_cvt_pk_bf16_f32 v32, v32, v32")
    e("v_lshlrev_b32 v4, 1, v0")
    e("ds_write_b16 v4, v32 offset:%d" % LQ)
    stamp(3)
    e("s_mov_b32 s37, 0")
    e("s_branch Q_DONE")
    e("Q_OTHER:")
    for i in range(PREK):
        k_load(i)
    e("s_mov_b32 s37, 1")
    e("Q_DONE:")
    e("s_waitcnt lgkmcnt(0)")
    e("s_barrier")
    stamp(4)
    e("v_lshrrev_b32 v3, 3, v0")
    e("v_mul_u32_u24 v3, %d, v3" % (72 * 32))
    e("v_and_b32 v4, 7, v0")
    e("v_lshl_add_u32 v3, v4, 5, v3")
    for i in range(4):
        e("v_mov_b32 v%d, 0" % (28 + i))
    e("v_cmp_gt_u32 vcc, 192, v0")
    e("s_and_saveexec_b64 s[40:41], vcc")
    e("ds_write_b128 v3, v[28:31] offset:%d" % (LA + 64 * 32))
    e("ds_write_b128 v3, v[28:31] offset:%d" % (LA + 64 * 32 + 16))
    e("s_mov_b64 exec, s[40:41]")
    e("v_lshlrev_b32 v4, 4, v9")
    for t in range(6):
        e("ds_read_b128 v[%d:%d], v4 offset:%d" % (QR + 4 * t, QR + 4 * t + 3, LQ + t * 64))
    if PREK:
        e("s_cmp_eq_u32 s37, 1")
        e("s_cbranch_scc1 K_REST")
        for i in range(PREK):
            k_load(i)
        e("K_REST:")
    for i in range(PREK, 24):
        k_load(i)
        if i >= DEPTH:
            e("s_waitcnt vmcnt(%d)" % DEPTH)
    for T in range(4):
        for i in range(4):
            e("v_mov_b32 v%d, 0" % (SRS[T] + i))
    e("s_waitcnt lgkmcnt(0)")
    nv = 0
    for i in range(24):
        T, t = i // 6, i % 6
        r = KR + i * 4
        e("s_waitcnt vmcnt(%d)" % (23 - i + nv))
        e("v_mfma_f32_16x16x32_bf16 v[%d:%d], v[%d:%d], v[%d:%d], v[%d:%d]" %
          (SRS[T], SRS[T] + 3, r, r + 3, QR + 4 * t, QR + 4 * t + 3, SRS[T], SRS[T] + 3))
        while nv < 24 and (23 - i + nv) < DEPTH:
            v_load(nv); nv += 1
    stamp(5)
    while nv < 24:
        v_load(nv); nv += 1
    e("s_cmp_ge_u32 s24, 6")
    e("s_cbranch_scc1 NO_WO")
    e("s_mul_i32 s27, s25, 192")
    e("s_mul_i32 s29, s26, 24")
    e("s_add_u32 s27, s27, s29")
    e("s_mul_i32 s27, s27, 1280")
    e("s_mul_i32 s29, s24, 5120")
    e("s_add_u32 s27, s27, s29")
    e("s_add_u32 s29, s29, %d" % LW)
    for i in range(5):
        e("s_mov_b32 m0, s29")
        e("s_nop 0")
        e("buffer_load_dwordx4 v6, s[52:55], s27 offen nt lds")
        e("s_add_u32 s27, s27, 1024")
        e("s_add_u32 s29, s29, 1024")
    e("s_mov_b32 s37, 5")
    e("s_branch WO_D")
    e("NO_WO:")
    e("s_mov_b32 s37, 0")
    e("WO_D:")
    SC = [SRS[T] + i for T in range(4) for i in range(4)]
    e("v_max3_f32 v252, v%d, v%d, v%d" % (SC[0], SC[1], SC[2]))
    for i in range(3, 16, 2):
        if i + 1 < 16:
            e("v_max3_f32 v252, v252, v%d, v%d" % (SC[i], SC[i + 1]))
        else:
            e("v_max_f32 v252, v252, v%d" % SC[i])
    e("s_nop 1")
    e("v_readlane_b32 s32, v252, 0")
    e("v_readlane_b32 s33, v252, 16")
    e("v_readlane_b32 s34, v252, 32")
    e("v_readlane_b32 s35, v252, 48")
    e("s_mov_b32 s36, %s" % C_SM)
    e("s_nop 3")
    e("v_mov_b32 v252, s32")
    e("v_max_f32 v252, s33, v252")
    e("v_max_f32 v252, s34, v252")
    e("v_max_f32 v252, s35, v252")
    e("v_mul_f32 v254, s36, v252")
    e("v_mov_b32 v253, 0")
    for i in range(16):
        e("v_fma_f32 v%d, v%d, s36, -v254" % (SC[i], SC[i]))
        e("v_exp_f32 v%d, v%d" % (SC[i], SC[i]))
        e("s_nop 0")
        e("v_add_f32 v253, v253, v%d" % SC[i])
    e("s_nop 1")
    e("v_readlane_b32 s32, v253, 0")
    e("v_readlane_b32 s33, v253, 16")
    e("v_readlane_b32 s34, v253, 32")
    e("v_readlane_b32 s35, v253, 48")
    e("s_nop 3")
    e("v_mov_b32 v253, s32")
    e("v_add_f32 v253, s33, v253")
    e("v_add_f32 v253, s34, v253")
    e("v_add_f32 v253, s35, v253")
    e("v_lshlrev_b32 v7, 8, v2")
    e("v_add_u32 v7, %d, v7" % LP)
    e("v_lshl_add_u32 v4, v9, 4, v7")
    for T in range(4):
        e("ds_write_b128 v4, v[%d:%d] offset:%d" % (SRS[T], SRS[T] + 3, T * 64))
    e("v_lshlrev_b32 v4, 3, v2")
    e("ds_write_b64 v4, v[252:253] offset:%d" % LM)
    e("s_waitcnt lgkmcnt(0)")
    for b in range(3):
        e("v_add_u32 v4, v7, v%d" % (13 + b))
        for a in range(0, 8, 2):
            e("ds_read2_b32 v[%d:%d], v4 offset0:%d offset1:%d" %
              (PR + b * 8 + a, PR + b * 8 + a + 1, a * 8, (a + 1) * 8))
    for i in range(24):
        e("v_mov_b32 v%d, 0" % (AR + i))
    e("s_waitcnt lgkmcnt(0)")
    e("s_cmp_eq_u32 s37, 0")
    e("s_cbranch_scc1 PV_B")
    for variant, extra in (("A", 5), ("B", 0)):
        if variant == "B":
            e("PV_B:")
        for n in range(24):
            a, b = n // 3, n % 3
            r = VR + n * 4
            e("s_waitcnt vmcnt(%d)" % (23 + extra - n))
            for d in range(4):
                e("v_lshlrev_b32 v3, 16, v%d" % (r + d))
                e("v_and_b32 v4, 0xffff0000, v%d" % (r + d))
                e("v_fmac_f32 v%d, v3, v%d" % (AR + b * 8 + 2 * d, PR + b * 8 + a))
                e("v_fmac_f32 v%d, v4, v%d" % (AR + b * 8 + 2 * d + 1, PR + b * 8 + a))
        if variant == "A":
            e("s_branch PV_D")
    e("PV_D:")
    stamp(6)
    for b in range(3):
        e("ds_write_b128 v5, v[%d:%d] offset:%d" % (AR + b * 8, AR + b * 8 + 3, LA + b * 72 * 32))
        e("ds_write_b128 v5, v[%d:%d] offset:%d" % (AR + b * 8 + 4, AR + b * 8 + 7, LA + b * 72 * 32 + 16))
    e("s_waitcnt vmcnt(0) lgkmcnt(0)")
    e("s_barrier")
    stamp(7)
    e("s_cmp_ge_u32 s24, 3")
    e("s_cbranch_scc1 GATE")
    e("v_mov_b32 v4, 0")
    for i in range(4):
        e("ds_read_b128 v[%d:%d], v4 offset:%d" % (32 + 4 * i, 35 + 4 * i, LM + 16 * i))
    e("s_waitcnt lgkmcnt(0)")
    e("v_max3_f32 v3, v32, v34, v36")
    e("v_max3_f32 v3, v3, v38, v40")
    e("v_max3_f32 v3, v3, v42, v44")
    e("v_max_f32 v3, v3, v46")
    e("v_mov_b32 v7, 0")
    for w in range(NW):
        e("v_sub_f32 v%d, v%d, v3" % (48 + w, 32 + 2 * w))
        e("v_mul_f32 v%d, s36, v%d" % (48 + w, 48 + w))
        e("v_exp_f32 v%d, v%d" % (48 + w, 48 + w))
        e("s_nop 0")
        e("v_fmac_f32 v7, v%d, v%d" % (48 + w, 33 + 2 * w))
    reduce_dump(60, 48, 80)
    e("v_mov_b32 v81, s38")
    e("s_lshl_b32 s27, s31, 11")
    e("s_add_u32 s27, s27, %d" % WS_P)
    e("v_lshlrev_b32 v4, 3, v0")
    e("buffer_store_dwordx2 v[80:81], v4, s[20:23], s27 offen sc1")
    e("v_mov_b32 v84, v3")
    e("v_mov_b32 v85, v7")
    e("v_mov_b32 v86, s38")
    e("v_mov_b32 v87, s38")
    e("v_cmp_eq_u32 vcc, 0, v0")
    e("s_and_saveexec_b64 s[40:41], vcc")
    e("buffer_store_dwordx4 v[84:87], v4, s[20:23], s27 offen offset:1536 sc1")
    e("s_mov_b64 exec, s[40:41]")
    stamp(8)
    e("s_cmp_eq_u32 s24, 0")
    e("s_cbranch_scc0 HOP1_D")
    e("s_lshl_b32 s27, s25, 14")
    e("s_add_u32 s27, s27, %d" % WS_P)
    e("s_mul_i32 s29, s26, 192")
    e("v_min_u32 v3, 23, v1")
    e("v_lshlrev_b32 v3, 3, v3")
    e("v_add_u32 v3, s29, v3")
    e("v_mov_b32 v4, 1536")
    e("s_add_u32 s32, s27, 4096")
    e("s_add_u32 s33, s27, 8192")
    e("s_add_u32 s34, s27, 12288")
    poll_begin("PO")
    for s_ in range(NSPLIT):
        sb = ["s27", "s32", "s33", "s34"][s_ // 2]
        e("buffer_load_dwordx2 v[%d:%d], v3, s[20:23], %s offen offset:%d sc1" % (64 + 2 * s_, 65 + 2 * s_, sb, (s_ % 2) * 2048))
        e("buffer_load_dwordx4 v[%d:%d], v4, s[20:23], %s offen offset:%d sc1" % (80 + 4 * s_, 83 + 4 * s_, sb, (s_ % 2) * 2048))
    e("s_waitcnt vmcnt(0)")
    e("v_cmp_ne_u32 vcc, s38, v65")
    for s_ in range(NSPLIT):
        if s_ > 0:
            e("v_cmp_ne_u32 s[42:43], s38, v%d" % (65 + 2 * s_))
            e("s_or_b64 vcc, vcc, s[42:43]")
        e("v_cmp_ne_u32 s[42:43], s38, v%d" % (82 + 4 * s_))
        e("s_or_b64 vcc, vcc, s[42:43]")
    poll_end("PO")
    stamp(9)
    e("v_mov_b32 v3, v80")
    for s_ in range(1, NSPLIT):
        e("v_max_f32 v3, v3, v%d" % (80 + 4 * s_))
    e("v_mov_b32 v8, 0")
    e("v_mov_b32 v9, 0")
    for s_ in range(NSPLIT):
        e("v_sub_f32 v10, v%d, v3" % (80 + 4 * s_))
        e("v_mul_f32 v10, s36, v10")
        e("v_exp_f32 v10, v10")
        e("s_nop 0")
        e("v_fmac_f32 v8, v10, v%d" % (64 + 2 * s_))
        e("v_fmac_f32 v9, v10, v%d" % (81 + 4 * s_))
    e("v_rcp_f32 v9, v9")
    e("s_nop 0")
    e("v_mul_f32 v8, v8, v9")
    rbf(8, 10)
    e("v_lshlrev_b32 v3, 2, v1")
    e("ds_write_b32 v3, v8 offset:%d" % LO)
    e("s_waitcnt lgkmcnt(0)")
    e("s_branch HOP1_D")
    e("GATE:")
    e("s_cmp_ge_u32 s24, 6")
    e("s_cbranch_scc1 HOP1_D")
    e("s_sub_u32 s33, s24, 3")
    e("s_lshl_b32 s33, s33, 8")
    e("s_add_u32 s33, s33, s2")
    e("s_cmp_ge_u32 s33, 640")
    e("s_cbranch_scc1 HOP1_D")
    srd(80, 64, 65, 3072)
    srd(84, 66, 67, 3072)
    srd(88, 68, 69, 3072)
    srd(92, 70, 71, 2)
    e("v_lshlrev_b32 v8, 4, v1")
    for j in range(3):
        e("buffer_load_dwordx4 v[%d:%d], v8, s[80:83], 0 offen offset:%d" % (140 + 4 * j, 143 + 4 * j, j * 1024))
        e("buffer_load_dwordx4 v[%d:%d], v8, s[84:87], 0 offen offset:%d" % (152 + 4 * j, 155 + 4 * j, j * 1024))
        e("buffer_load_dwordx4 v[%d:%d], v8, s[88:91], 0 offen offset:%d" % (164 + 4 * j, 167 + 4 * j, j * 1024))
    e("v_mov_b32 v9, 0")
    e("buffer_load_ushort v176, v9, s[92:95], 0 offen")
    e("v_mul_u32_u24 v6, 2560, v2")
    e("v_add_u32 v6, %d, v6" % LX)
    e("v_lshl_add_u32 v7, v1, 3, v6")
    for i in range(5):
        e("ds_read_b64 v[%d:%d], v7 offset:%d" % (20 + 2 * i, 21 + 2 * i, i * 512))
    e("s_waitcnt lgkmcnt(0)")
    layernorm(20, 10, 30, 40)
    for i in range(5):
        e("ds_write_b64 v7, v[%d:%d] offset:%d" % (20 + 2 * i, 21 + 2 * i, i * 512))
    e("v_mov_b32 v9, s33")
    e("v_lshl_add_u32 v10, v9, 2, v6")
    e("s_waitcnt lgkmcnt(0)")
    e("ds_read_b32 v11, v10")
    e("v_mov_b32 v12, 0")
    e("s_mov_b32 s34, 0x3d372713")
    e("s_mov_b32 s35, %s" % C_GELU)
    e("s_waitcnt vmcnt(0) lgkmcnt(0)")
    for j in range(3):
        for d in range(4):
            for half in range(2):
                op = "v_lshlrev_b32 v%d, 16, v%d" if half == 0 else "v_and_b32 v%d, 0xffff0000, v%d"
                e(op % (13, 140 + 4 * j + d))
                e(op % (14, 152 + 4 * j + d))
                e(op % (15, 164 + 4 * j + d))
                e("v_mul_f32 v13, v13, v11")
                rbf(13, 16)
                e("v_add_f32 v13, v13, v14")
                rbf(13, 16)
                e("v_mul_f32 v16, v13, v13")
                e("v_mul_f32 v16, s34, v16")
                e("v_fma_f32 v16, v16, v13, v13")
                e("v_mul_f32 v16, s35, v16")
                e("v_exp_f32 v16, v16")
                e("s_nop 0")
                e("v_add_f32 v16, 1.0, v16")
                e("v_rcp_f32 v16, v16")
                e("s_nop 0")
                e("v_mul_f32 v13, v13, v16")
                rbf(13, 16)
                e("v_fmac_f32 v12, v13, v15")
    wave_sum(12, 37)
    e("v_mov_b32 v12, s37")
    rbf(12, 16)
    e("v_lshlrev_b32 v176, 16, v176")
    e("v_add_f32 v12, v12, v176")
    rbf(12, 16)
    e("v_mul_f32 v13, 0xbfb8aa3b, v12")
    e("v_exp_f32 v13, v13")
    e("s_nop 0")
    e("v_add_f32 v13, 1.0, v13")
    e("v_rcp_f32 v13, v13")
    e("s_nop 0")
    e("v_mul_f32 v12, v12, v13")
    rbf(12, 16)
    e("v_mov_b32 v13, s38")
    e("v_lshlrev_b32 v9, 3, v9")
    e("s_mov_b32 s27, %d" % WS_G)
    e("v_cmp_eq_u32 vcc, 0, v1")
    e("s_and_saveexec_b64 s[40:41], vcc")
    e("buffer_store_dwordx2 v[12:13], v9, s[20:23], s27 offen sc1")
    e("s_mov_b64 exec, s[40:41]")
    e("HOP1_D:")
    e("s_barrier")
    stamp(10)
    e("v_mul_u32_u24 v3, 52429, v0")
    e("v_lshrrev_b32 v3, 22, v3")
    e("v_mul_u32_u24 v4, 80, v3")
    e("v_sub_u32 v4, v0, v4")
    e("v_cmp_gt_u32 vcc, 480, v0")
    e("s_and_saveexec_b64 s[40:41], vcc")
    e("s_cbranch_execz GEMV_D")
    e("v_mul_u32_u24 v5, 5120, v3")
    e("v_lshl_add_u32 v5, v4, 4, v5")
    e("v_add_u32 v5, %d, v5" % LW)
    e("v_lshlrev_b32 v6, 4, v3")
    e("ds_read_b128 v[20:23], v6 offset:%d" % LO)
    for i in range(4):
        e("ds_read_b128 v[%d:%d], v5 offset:%d" % (32 + 4 * i, 35 + 4 * i, i * 1280))
    for c in range(8):
        e("v_mov_b32 v%d, 0" % (48 + c))
    e("s_waitcnt lgkmcnt(0)")
    for i in range(4):
        for d in range(4):
            e("v_lshlrev_b32 v7, 16, v%d" % (32 + 4 * i + d))
            e("v_and_b32 v8, 0xffff0000, v%d" % (32 + 4 * i + d))
            e("v_fmac_f32 v%d, v7, v%d" % (48 + 2 * d, 20 + i))
            e("v_fmac_f32 v%d, v8, v%d" % (49 + 2 * d, 20 + i))
    e("v_mul_u32_u24 v5, 2560, v3")
    e("v_lshl_add_u32 v5, v4, 5, v5")
    e("ds_write_b128 v5, v[48:51] offset:%d" % LF)
    e("ds_write_b128 v5, v[52:55] offset:%d" % (LF + 16))
    e("GEMV_D:")
    e("s_mov_b64 exec, s[40:41]")
    e("s_waitcnt lgkmcnt(0)")
    e("s_barrier")
    e("v_lshlrev_b32 v3, 2, v0")
    for r in range(6):
        e("ds_read_b32 v%d, v3 offset:%d" % (20 + r, LF + r * 2560))
    e("v_cmp_gt_u32 vcc, 128, v0")
    e("s_and_saveexec_b64 s[40:41], vcc")
    for r in range(6):
        e("ds_read_b32 v%d, v3 offset:%d" % (30 + r, LF + r * 2560 + 2048))
    e("s_mov_b64 exec, s[40:41]")
    e("s_waitcnt lgkmcnt(0)")
    for r in range(1, 6):
        e("v_add_f32 v20, v20, v%d" % (20 + r))
        e("v_add_f32 v30, v30, v%d" % (30 + r))
    e("v_mov_b32 v21, s38")
    e("v_mov_b32 v31, s38")
    e("s_mul_i32 s27, s2, 5120")
    e("s_add_u32 s27, s27, %d" % WS_F)
    e("v_lshlrev_b32 v3, 3, v0")
    e("buffer_store_dwordx2 v[20:21], v3, s[20:23], s27 offen sc1")
    e("s_add_u32 s27, s27, 4096")
    e("s_and_saveexec_b64 s[40:41], vcc")
    e("buffer_store_dwordx2 v[30:31], v3, s[20:23], s27 offen sc1")
    e("s_mov_b64 exec, s[40:41]")
    stamp(11)
    e("s_cmp_ge_u32 s2, 40")
    e("s_cbranch_scc1 K_END")
    e("s_cmp_eq_u32 s24, 0")
    e("s_cbranch_scc0 FIN_G_D")
    e("v_and_b32 v3, 15, v1")
    e("s_lshl_b32 s27, s2, 5")
    e("v_lshlrev_b32 v62, 1, v3")
    e("buffer_load_ushort v61, v62, s[44:47], s27 offen")
    e("s_lshl_b32 s29, s2, 4")
    e("v_add_u32 v10, s29, v3")
    e("v_and_b32 v11, 7, v10")
    e("v_lshlrev_b32 v11, 4, v11")
    e("v_lshrrev_b32 v12, 3, v10")
    e("v_and_b32 v12, 3, v12")
    e("v_lshl_add_u32 v11, v12, 2, v11")
    e("v_lshlrev_b32 v10, 3, v10")
    e("s_mov_b32 s29, %d" % WS_G)
    poll_begin("PG")
    e("buffer_load_dword v14, v11, s[56:59], 0 offen offset:128 sc1")
    e("buffer_load_dwordx2 v[12:13], v10, s[20:23], s29 offen sc1")
    e("s_waitcnt vmcnt(0)")
    e("v_cmp_eq_u32 vcc, 0, v14")
    e("v_cmp_ne_u32 s[42:43], v14, v13")
    e("s_or_b64 vcc, vcc, s[42:43]")
    poll_end("PG")
    e("v_mov_b32 v60, v12")
    e("FIN_G_D:")
    e("v_lshrrev_b32 v3, 3, v1")
    e("v_lshl_add_u32 v3, v2, 5, v3")
    e("v_and_b32 v4, 7, v3")
    e("v_lshlrev_b32 v4, 4, v4")
    e("v_mul_u32_u24 v3, 5120, v3")
    e("v_and_b32 v5, 7, v1")
    e("v_lshl_add_u32 v3, v5, 4, v3")
    e("s_lshl_b32 s27, s2, 7")
    e("s_add_u32 s27, s27, %d" % WS_F)
    e("s_add_u32 s29, s27, %d" % (16 * 5120))
    poll_begin("PF")
    e("buffer_load_dwordx4 v[40:43], v4, s[56:59], 0 offen offset:128 sc1")
    for k in range(4):
        sb = "s27" if k < 2 else "s29"
        e("buffer_load_dwordx4 v[%d:%d], v3, s[20:23], %s offen offset:%d sc1" % (20 + 4 * k, 23 + 4 * k, sb, 0))
        if k % 2 == 0:
            e("s_add_u32 %s, %s, %d" % (sb, sb, 8 * 5120))
    e("s_sub_u32 s27, s27, %d" % (8 * 5120))
    e("s_sub_u32 s29, s29, %d" % (8 * 5120))
    e("s_waitcnt vmcnt(0)")
    e("v_cmp_eq_u32 vcc, 0, v40")
    for k in range(4):
        if k > 0:
            e("v_cmp_eq_u32 s[42:43], 0, v%d" % (40 + k))
            e("s_or_b64 vcc, vcc, s[42:43]")
        e("v_cmp_ne_u32 s[42:43], v%d, v%d" % (40 + k, 21 + 4 * k))
        e("s_or_b64 vcc, vcc, s[42:43]")
        e("v_cmp_ne_u32 s[42:43], v%d, v%d" % (40 + k, 23 + 4 * k))
        e("s_or_b64 vcc, vcc, s[42:43]")
    poll_end("PF")
    stamp(12)
    for k in range(1, 4):
        e("v_add_f32 v20, v20, v%d" % (20 + 4 * k))
        e("v_add_f32 v22, v22, v%d" % (22 + 4 * k))
    e("v_mov_b32 v21, v22")
    e("v_lshlrev_b32 v5, 3, v0")
    e("ds_write_b64 v5, v[20:21] offset:%d" % LR)
    e("s_waitcnt lgkmcnt(0)")
    e("s_barrier")
    e("s_cmp_eq_u32 s24, 0")
    e("s_cbranch_scc0 K_END")
    e("v_and_b32 v3, 15, v1")
    e("v_lshrrev_b32 v4, 4, v1")
    e("v_lshlrev_b32 v5, 10, v4")
    e("v_lshl_add_u32 v5, v3, 2, v5")
    for k in range(16):
        e("ds_read_b32 v%d, v5 offset:%d" % (32 + k, LR + k * 64))
    e("s_lshl_b32 s27, s2, 5")
    e("s_waitcnt lgkmcnt(0)")
    for k in range(1, 16):
        e("v_add_f32 v32, v32, v%d" % (32 + k))
    e("v_lshlrev_b32 v5, 2, v1")
    e("ds_write_b32 v5, v32 offset:%d" % (LR + 8192))
    e("v_lshlrev_b32 v6, 2, v3")
    e("s_waitcnt lgkmcnt(0)")
    for k in range(4):
        e("ds_read_b32 v%d, v6 offset:%d" % (40 + k, LR + 8192 + k * 64))
    e("s_waitcnt lgkmcnt(0)")
    e("v_add_f32 v40, v40, v41")
    e("v_add_f32 v42, v42, v43")
    e("v_add_f32 v40, v40, v42")
    rbf(40, 10)
    e("v_mul_f32 v40, v40, v60")
    rbf(40, 10)
    e("v_lshlrev_b32 v9, 16, v61")
    e("v_add_f32 v40, v40, v9")
    e("v_cvt_pk_bf16_f32 v40, v40, v40")
    srd(92, 76, 77, 1280)
    e("v_cmp_gt_u32 vcc, 16, v1")
    e("s_and_saveexec_b64 s[40:41], vcc")
    e("buffer_store_short v40, v62, s[92:95], s27 offen")
    stamp(13)
    e("K_END:")
    e("s_endpgm")

e(HEADER.rstrip())
e("; @launch grid=(%d,1,1) block=(512,1,1) lds=%d" % (A_WG, A_LDS))
e('.amdgcn_target "amdgcn-amd-amdhsa--gfx950"')
e(".text")
gen_main()
e('.section .rodata,"a"')
descriptor(NAME + "_kernel", 256)
open(OUT, "w").write("\n".join(L) + "\n")
```

```python
import sys, struct, math, os
LATE = int(os.environ.get('LATE','0'))

NAME = "recurrent_scan__sliding_block_cached__mixer_token_mlp__decode"
OUT = sys.argv[1] if len(sys.argv) > 1 else "cdna_kernels/%s.s" % NAME
HEADER = open("cdna_kernels/%s.s.ref" % NAME).read().split("; Override launch")[0]

WS_QP = 0
WS_G = 0x40000
WS_P = 0x80000
WS_F = 0x100000
WS_T = 0x280000
WS_BYTES = 0x300000
NSPLIT = 8

L = []
import re
def e(s=""):
    if s.startswith("buffer_"):
        m = re.search(r"offset:(\d+)", s)
        assert not m or int(m.group(1)) < 4096, s
    L.append(s)
def fhex(x):
    return "0x%08x" % struct.unpack("<I", struct.pack("<f", x))[0]
C_SM = fhex(math.log2(math.e) / math.sqrt(192.0))
C_GELU = fhex(-2.0 * math.sqrt(2.0 / math.pi) * math.log2(math.e))

def kernel_begin(name):
    e(".globl %s" % name)
    e(".p2align 8")
    e(".type %s,@function" % name)
    e("%s:" % name)

def srd(d, lo, hi, nbytes):
    e("s_mov_b32 s%d, s%d" % (d, lo))
    e("s_and_b32 s%d, s%d, 0xffff" % (d + 1, hi))
    e("s_mov_b32 s%d, 0x%x" % (d + 2, nbytes))
    e("s_mov_b32 s%d, 0x00020000" % (d + 3))

def wave_sum(v, tmp_s):
    e("s_nop 1")
    e("v_add_f32_dpp v%d, v%d, v%d quad_perm:[1,0,3,2] row_mask:0xf bank_mask:0xf" % (v, v, v))
    e("s_nop 1")
    e("v_add_f32_dpp v%d, v%d, v%d quad_perm:[2,3,0,1] row_mask:0xf bank_mask:0xf" % (v, v, v))
    e("s_nop 1")
    e("v_add_f32_dpp v%d, v%d, v%d row_half_mirror row_mask:0xf bank_mask:0xf" % (v, v, v))
    e("s_nop 1")
    e("v_add_f32_dpp v%d, v%d, v%d row_mirror row_mask:0xf bank_mask:0xf" % (v, v, v))
    e("s_nop 1")
    e("v_add_f32_dpp v%d, v%d, v%d row_bcast:15 row_mask:0xa bank_mask:0xf" % (v, v, v))
    e("s_nop 1")
    e("v_add_f32_dpp v%d, v%d, v%d row_bcast:31 row_mask:0xc bank_mask:0xf" % (v, v, v))
    e("s_nop 1")
    e("v_readlane_b32 s%d, v%d, 63" % (tmp_s, v))
    e("s_nop 3")

def rbf(v, tmp):
    e("v_cvt_pk_bf16_f32 v%d, v%d, v%d" % (tmp, v, v))
    e("v_lshlrev_b32 v%d, 16, v%d" % (v, tmp))

def layernorm(xv, n, t0, s0):
    e("v_mov_b32 v%d, v%d" % (t0, xv))
    for i in range(1, n):
        e("v_add_f32 v%d, v%d, v%d" % (t0, t0, xv + i))
    wave_sum(t0, s0)
    e("v_mov_b32 v%d, s%d" % (t0, s0))
    e("v_mul_f32 v%d, 0x3acccccd, v%d" % (t0, t0))
    e("v_mov_b32 v%d, 0" % (t0 + 1))
    for i in range(n):
        e("v_sub_f32 v%d, v%d, v%d" % (t0 + 2, xv + i, t0))
        e("v_fmac_f32 v%d, v%d, v%d" % (t0 + 1, t0 + 2, t0 + 2))
    wave_sum(t0 + 1, s0 + 1)
    e("v_mov_b32 v%d, s%d" % (t0 + 1, s0 + 1))
    e("v_mul_f32 v%d, 0x3acccccd, v%d" % (t0 + 1, t0 + 1))
    rbf(t0 + 1, t0 + 2)
    e("v_add_f32 v%d, 0x3727c5ac, v%d" % (t0 + 1, t0 + 1))
    rbf(t0 + 1, t0 + 2)
    e("v_sqrt_f32 v%d, v%d" % (t0 + 1, t0 + 1))
    e("s_nop 0")
    rbf(t0 + 1, t0 + 2)
    e("v_rcp_f32 v%d, v%d" % (t0 + 1, t0 + 1))
    e("s_nop 0")
    rbf(t0, t0 + 2)
    for i in range(n):
        e("v_sub_f32 v%d, v%d, v%d" % (xv + i, xv + i, t0))
        rbf(xv + i, t0 + 2)
        e("v_mul_f32 v%d, v%d, v%d" % (xv + i, xv + i, t0 + 1))
        rbf(xv + i, t0 + 2)

def descriptor(name, vgpr, sgpr=102):
    acc = (vgpr + 3) // 4 * 4
    e(".p2align 6")
    e(".amdhsa_kernel %s" % name)
    e("  .amdhsa_next_free_vgpr %d" % vgpr)
    e("  .amdhsa_next_free_sgpr %d" % sgpr)
    e("  .amdhsa_accum_offset %d" % acc)
    e("  .amdhsa_group_segment_fixed_size 0")
    e("  .amdhsa_kernarg_size 104")
    e("  .amdhsa_user_sgpr_count 2")
    e("  .amdhsa_user_sgpr_kernarg_segment_ptr 1")
    e("  .amdhsa_system_sgpr_workgroup_id_x 1")
    e(".end_amdhsa_kernel")


A_WG = 256
HEAD_STRIDE = 32768 * 384
KV_BYTES = 32 * HEAD_STRIDE
WIN0 = (32768 - 4096)
NW = 8
LA = 0
LQ = LA + NW * 3 * 72 * 32
LM = LQ + 512
LN = LM + 64
LP = LN + 64
LO = LP + NW * 256
LX = LO + 1024
LW = LX + 8 * 2560
A_LDS = LW + 30720
LF = 0
LR = 16384
LQD = 32768

VR = 32
QR = 128
KR = 152
PR = 152
AR = 176
SRS = [20, 24, 28, 248]
POLL_LIMIT = 1 << 16
DEPTH = int(os.environ.get("DEPTH", "10"))
PREK = int(os.environ.get("PREK", "0"))
STAMP = int(os.environ.get("STAMP", "0"))
CPF = int(os.environ.get("CPF", "0"))
CPF_WAVE = 7

DBGT = int(os.environ.get("DBGT", "0"))
def stamp(i):
    if DBGT:
        lab = "DT%d" % i
        e("s_or_b32 s62, s2, s24")
        e("s_cmp_eq_u32 s62, 0")
        e("s_cbranch_scc0 %s" % lab)
        e("s_memrealtime s[100:101]")
        e("s_waitcnt lgkmcnt(0)")
        e("s_sub_u32 s100, s100, s99")
        e("v_mov_b32 v19, s100")
        e("s_mov_b32 s62, %d" % (i * 4))
        e("buffer_store_dword v19, off, s[56:59], s62")
        e("%s:" % lab)
        return
    if not STAMP: return
    e("s_memrealtime s[100:101]")
    e("s_waitcnt lgkmcnt(0)")
    e("v_mov_b32 v19, s100")
    e("s_lshl_b32 s62, s2, 9")
    e("s_lshl_b32 s63, s24, 6")
    e("s_add_u32 s62, s62, s63")
    e("s_add_u32 s62, s62, %d" % (WS_T + i * 4))
    e("buffer_store_dword v19, off, s[20:23], s62")

def reduce_dump(RR, scale_regs, dst):
    e("v_mov_b32 v%d, 0" % dst)
    def fin(w):
        pb = RR + (w % 2) * 9
        for k in range(1, 9):
            e("v_add_f32 v%d, v%d, v%d" % (pb, pb, pb + k))
        e("v_fmac_f32 v%d, v%d, v%d" % (dst, scale_regs + w, pb))
    for w in range(NW):
        base = RR + (w % 2) * 9
        for b in range(3):
            for k in range(3):
                e("ds_read_b32 v%d, v%d offset:%d" % (base + b * 3 + k, 10 + b,
                                                    LA + (w * 3 + b) * 72 * 32 + k * 24 * 32))
        if w > 0:
            e("s_waitcnt lgkmcnt(9)")
            fin(w - 1)
    e("s_waitcnt lgkmcnt(0)")
    fin(NW - 1)

def poll_begin(label):
    e("s_mov_b32 s60, 0")
    e("%s:" % label)

def poll_end(label):
    e("s_cbranch_vccz %s_D" % label)
    e("s_sleep 1")
    e("s_add_u32 s60, s60, 1")
    e("s_cmp_lt_u32 s60, %d" % POLL_LIMIT)
    e("s_cbranch_scc1 %s" % label)
    e("%s_D:" % label)

def k_load(i):
    T, t = i // 6, i % 6
    r = KR + i * 4
    if t == 0 and T > 0:
        e("s_add_u32 s29, s29, 6144")
    e("buffer_load_dwordx4 v[%d:%d], v8, s[12:15], s29 offen offset:%d nt" % (r, r + 3, t * 64))

def v_load(n):
    r = VR + n * 4
    if n % 4 == 0 and n > 0:
        e("s_add_u32 s30, s30, 4096")
    e("buffer_load_dwordx4 v[%d:%d], v6, s[16:19], s30 offen offset:%d nt" % (r, r + 3, (n % 4) * 1024))

def gen_main():
    kernel_begin(NAME + "_kernel")
    e("s_cmp_ge_u32 s2, %d" % A_WG)
    e("s_cbranch_scc1 K_END")
    e("s_load_dwordx8 s[4:11], s[0:1], 0")
    e("s_load_dwordx2 s[74:75], s[0:1], 32")
    e("s_load_dwordx8 s[64:71], s[0:1], 48")
    e("s_load_dwordx4 s[76:79], s[0:1], 80")
    e("s_load_dwordx2 s[72:73], s[0:1], 96")
    e("s_memrealtime s[98:99]")
    e("v_and_b32 v1, 63, v0")
    e("v_lshrrev_b32 v2, 6, v0")
    e("s_nop 0")
    e("v_readfirstlane_b32 s24, v2")
    e("s_and_b32 s25, s2, 7")
    e("s_lshl_b32 s25, s25, 2")
    e("s_lshr_b32 s26, s2, 3")
    e("s_and_b32 s26, s26, 3")
    e("s_or_b32 s25, s25, s26")
    e("s_lshr_b32 s26, s2, 5")
    e("s_lshl_b32 s31, s25, 3")
    e("s_add_u32 s31, s31, s26")
    if CPF:
        e("s_cmp_eq_u32 s24, %d" % CPF_WAVE)
        e("s_cbranch_scc0 NO_CPF")
        e("s_getpc_b64 s[40:41]")
        e("v_lshlrev_b32 v4, 4, v1")
        e("v_mov_b32 v5, s41")
        e("v_add_co_u32 v4, vcc, s40, v4")
        e("s_nop 1")
        e("v_addc_co_u32 v5, vcc, 0, v5, vcc")
        for i in range(4):
            e("global_load_dwordx4 v[%d:%d], v[4:5], off offset:%d" % (200 + 4 * i, 203 + 4 * i, i * 1024))
        for j in range(1, CPF):
            e("v_add_co_u32 v4, vcc, 4096, v4")
            e("s_nop 1")
            e("v_addc_co_u32 v5, vcc, 0, v5, vcc")
            for i in range(4):
                e("global_load_dwordx4 v[%d:%d], v[4:5], off offset:%d" % (200 + 4 * i, 203 + 4 * i, i * 1024))
        e("NO_CPF:")
    e("s_waitcnt lgkmcnt(0)")
    srd(44, 4, 5, 1280)
    srd(12, 6, 7, KV_BYTES)
    srd(16, 8, 9, KV_BYTES)
    srd(48, 10, 11, 640 * 6144 * 2)
    srd(20, 72, 73, WS_BYTES)
    srd(52, 74, 75, 6144 * 640 * 2)
    srd(56, 78, 79, 256)
    e("s_mov_b32 s99, s98")
    e("s_or_b32 s98, s98, 1")
    e("v_mov_b32 v250, s98")
    e("v_mov_b32 v251, 0")
    e("s_lshl_b32 s27, s25, 2")
    e("s_add_u32 s27, s27, 128")
    e("v_cmp_eq_u32 vcc, 0, v0")
    e("s_and_saveexec_b64 s[40:41], vcc")
    e("s_cbranch_execz NO_CAS")
    e("buffer_atomic_cmpswap v[250:251], off, s[56:59], s27 sc0")
    e("NO_CAS:")
    e("s_mov_b64 exec, s[40:41]")
    e("v_lshlrev_b32 v3, 2, v1")
    for i in range(5):
        e("buffer_load_dword v%d, v3, s[44:47], 0 offen offset:%d" % (20 + i, i * 256))
    e("v_lshrrev_b32 v9, 4, v1")
    e("v_and_b32 v4, 15, v1")
    e("v_mul_u32_u24 v16, 12288, v9")
    e("v_lshl_add_u32 v16, v4, 4, v16")
    e("s_lshr_b32 s27, s26, 1")
    e("s_mul_i32 s27, s27, 160")
    e("s_mul_i32 s30, s24, 20")
    e("s_add_u32 s27, s27, s30")
    e("s_mov_b32 s39, s27")
    e("s_mul_i32 s27, s27, 12288")
    e("s_mul_i32 s30, s25, 384")
    e("s_add_u32 s27, s27, s30")
    e("s_and_b32 s30, s26, 1")
    e("s_mul_i32 s30, s30, 192")
    e("s_add_u32 s27, s27, s30")
    e("v_cmp_gt_u32 vcc, 12, v4")
    e("s_and_saveexec_b64 s[40:41], vcc")
    for n in range(5):
        e("buffer_load_dwordx4 v[%d:%d], v16, s[48:51], s27 offen nt" % (32 + 4 * n, 35 + 4 * n))
        if n < 4:
            e("s_add_u32 s27, s27, %d" % (4 * 12288))
    e("s_mov_b64 exec, s[40:41]")
    stamp(0)
    for b in range(3):
        e("v_add_u32 v5, %d, v1" % (64 * b))
        e("v_mul_u32_u24 v6, 2731, v5")
        e("v_lshrrev_b32 v4, 16, v6")
        e("v_lshlrev_b32 v%d, 2, v4" % (13 + b))
    e("s_mul_i32 s28, s25, %d" % HEAD_STRIDE)
    e("s_lshl_b32 s29, s26, 9")
    e("s_lshl_b32 s30, s24, 6")
    e("s_add_u32 s29, s29, s30")
    e("s_add_u32 s29, s29, %d" % WIN0)
    e("s_mul_i32 s29, s29, 384")
    e("s_add_u32 s28, s28, s29")
    e("v_and_b32 v8, 15, v1")
    e("v_mul_u32_u24 v8, 384, v8")
    e("v_lshl_add_u32 v8, v9, 4, v8")
    e("v_mul_u32_u24 v5, %d, v2" % (3 * 72 * 32))
    e("v_lshl_add_u32 v5, v1, 5, v5")
    e("v_lshlrev_b32 v6, 4, v1")
    e("v_lshrrev_b32 v4, 3, v0")
    e("v_and_b32 v7, 7, v0")
    for b in range(3):
        e("v_add_u32 v17, %d, v4" % (8 * b))
        e("v_subrev_u32 v3, 24, v17")
        e("v_cmp_le_u32 vcc, 24, v17")
        e("s_nop 1")
        e("v_cndmask_b32 v17, v17, v3, vcc")
        e("v_lshlrev_b32 v17, 5, v17")
        e("v_lshl_add_u32 v%d, v7, 2, v17" % (10 + b))
    e("s_waitcnt vmcnt(5)")
    e("v_readfirstlane_b32 s38, v250")
    for i in range(4, -1, -1):
        e("v_and_b32 v%d, 0xffff0000, v%d" % (22 + 2 * i + 1, 20 + i))
        e("v_lshlrev_b32 v%d, 16, v%d" % (22 + 2 * i, 20 + i))
    e("s_cmp_eq_u32 s38, 0")
    e("s_cselect_b32 s38, s98, s38")
    e("s_cmp_eq_u32 s24, 0")
    e("s_cbranch_scc0 NO_NW")
    e("v_mov_b32 v250, s38")
    e("v_mov_b32 v251, 0")
    e("ds_write_b32 v251, v250 offset:%d" % LN)
    e("NO_NW:")
    layernorm(22, 10, 248, 36)
    e("v_mul_u32_u24 v17, 2560, v2")
    e("v_add_u32 v17, %d, v17" % LX)
    e("v_lshl_add_u32 v7, v1, 3, v17")
    for i in range(5):
        e("ds_write_b64 v7, v[%d:%d] offset:%d" % (22 + 2 * i, 23 + 2 * i, i * 512))
    e("s_lshl_b32 s39, s39, 2")
    e("v_lshl_add_u32 v17, v9, 2, v17")
    e("v_add_u32 v17, s39, v17")
    e("s_waitcnt lgkmcnt(0)")
    for n in range(5):
        e("ds_read_b32 v%d, v17 offset:%d" % (20 + n, n * 16))
    for i in range(8):
        e("v_mov_b32 v%d, 0" % (248 + i))
    e("s_waitcnt vmcnt(0) lgkmcnt(0)")
    stamp(1)
    for n in range(5):
        for d in range(4):
            e("v_lshlrev_b32 v30, 16, v%d" % (32 + 4 * n + d))
            e("v_and_b32 v31, 0xffff0000, v%d" % (32 + 4 * n + d))
            e("v_fmac_f32 v%d, v30, v%d" % (248 + 2 * d, 20 + n))
            e("v_fmac_f32 v%d, v31, v%d" % (249 + 2 * d, 20 + n))
    e("v_lshlrev_b32 v3, 5, v0")
    e("ds_write_b128 v3, v[248:251] offset:%d" % LQD)
    e("ds_write_b128 v3, v[252:255] offset:%d" % (LQD + 16))
    e("s_waitcnt lgkmcnt(0)")
    e("s_barrier")
    e("v_mov_b32 v251, 0")
    e("ds_read_b32 v250, v251 offset:%d" % LN)
    e("s_waitcnt lgkmcnt(0)")
    e("v_readfirstlane_b32 s38, v250")
    e("s_nop 3")
    e("s_mov_b32 s29, s28")
    e("s_mov_b32 s30, s28")
    e("s_cmp_ge_u32 s24, 3")
    e("s_cbranch_scc1 Q_OTHER")
    e("s_cmp_ge_u32 s24, 2")
    e("s_cbranch_scc1 Q_POLL")
    e("v_lshrrev_b32 v3, 3, v0")
    e("v_and_b32 v4, 7, v0")
    e("v_lshlrev_b32 v3, 5, v3")
    e("v_lshl_add_u32 v3, v4, 2, v3")
    for k in range(32):
        e("ds_read_b32 v%d, v3 offset:%d" % (32 + k, LQD + k * 512))
    e("s_waitcnt lgkmcnt(0)")
    for k in range(1, 32):
        e("v_add_f32 v32, v32, v%d" % (32 + k))
    e("v_mov_b32 v33, s38")
    e("s_lshl_b32 s27, s31, 10")
    e("s_add_u32 s27, s27, %d" % WS_QP)
    e("v_lshlrev_b32 v3, 3, v0")
    e("v_cmp_gt_u32 vcc, 96, v0")
    e("s_and_saveexec_b64 s[40:41], vcc")
    e("buffer_store_dwordx2 v[32:33], v3, s[20:23], s27 offen sc1")
    e("s_mov_b64 exec, s[40:41]")
    stamp(2)
    e("Q_POLL:")
    e("s_lshl_b32 s27, s25, 13")
    e("s_add_u32 s27, s27, %d" % WS_QP)
    e("v_cmp_le_u32 vcc, 96, v0")
    e("v_lshlrev_b32 v3, 3, v0")
    e("v_add_u32 v4, %d, v3" % (1024 - 768))
    e("s_nop 1")
    e("v_cndmask_b32 v3, v3, v4, vcc")
    e("s_add_u32 s33, s27, 4096")
    poll_begin("PQ")
    for kp in range(4):
        e("buffer_load_dwordx2 v[%d:%d], v3, s[20:23], %s offen offset:%d sc1" % (32 + 2 * kp, 33 + 2 * kp, "s27" if kp < 2 else "s33", (kp % 2) * 2048))
    e("s_waitcnt vmcnt(0)")
    e("v_cmp_ne_u32 vcc, s38, v33")
    for kp in range(1, 4):
        e("v_cmp_ne_u32 s[42:43], s38, v%d" % (33 + 2 * kp))
        e("s_or_b64 vcc, vcc, s[42:43]")
    poll_end("PQ")
    e("v_add_f32 v32, v32, v34")
    e("v_add_f32 v36, v36, v38")
    e("v_add_f32 v32, v32, v36")
    e("v_cvt_pk_bf16_f32 v32, v32, v32")
    e("v_lshlrev_b32 v4, 1, v0")
    e("ds_write_b16 v4, v32 offset:%d" % LQ)
    stamp(3)
    e("s_mov_b32 s37, 0")
    e("s_branch Q_DONE")
    e("Q_OTHER:")
    for i in range(PREK):
        k_load(i)
    e("s_mov_b32 s37, 1")
    e("Q_DONE:")
    e("s_waitcnt lgkmcnt(0)")
    e("s_barrier")
    stamp(4)
    e("v_lshrrev_b32 v3, 3, v0")
    e("v_mul_u32_u24 v3, %d, v3" % (72 * 32))
    e("v_and_b32 v4, 7, v0")
    e("v_lshl_add_u32 v3, v4, 5, v3")
    for i in range(4):
        e("v_mov_b32 v%d, 0" % (28 + i))
    e("v_cmp_gt_u32 vcc, 192, v0")
    e("s_and_saveexec_b64 s[40:41], vcc")
    e("ds_write_b128 v3, v[28:31] offset:%d" % (LA + 64 * 32))
    e("ds_write_b128 v3, v[28:31] offset:%d" % (LA + 64 * 32 + 16))
    e("s_mov_b64 exec, s[40:41]")
    e("v_lshlrev_b32 v4, 4, v9")
    for t in range(6):
        e("ds_read_b128 v[%d:%d], v4 offset:%d" % (QR + 4 * t, QR + 4 * t + 3, LQ + t * 64))
    if PREK:
        e("s_cmp_eq_u32 s37, 1")
        e("s_cbranch_scc1 K_REST")
        for i in range(PREK):
            k_load(i)
        e("K_REST:")
    for i in range(PREK, 24):
        k_load(i)
        if i >= DEPTH:
            e("s_waitcnt vmcnt(%d)" % DEPTH)
    for T in range(4):
        for i in range(4):
            e("v_mov_b32 v%d, 0" % (SRS[T] + i))
    e("s_waitcnt lgkmcnt(0)")
    nv = 0
    for i in range(24):
        T, t = i // 6, i % 6
        r = KR + i * 4
        e("s_waitcnt vmcnt(%d)" % (23 - i + nv))
        e("v_mfma_f32_16x16x32_bf16 v[%d:%d], v[%d:%d], v[%d:%d], v[%d:%d]" %
          (SRS[T], SRS[T] + 3, r, r + 3, QR + 4 * t, QR + 4 * t + 3, SRS[T], SRS[T] + 3))
        while nv < 24 and (23 - i + nv) < DEPTH:
            v_load(nv); nv += 1
    stamp(5)
    while nv < 24:
        v_load(nv); nv += 1
    e("s_cmp_ge_u32 s24, 6")
    e("s_cbranch_scc1 NO_WO")
    e("s_mul_i32 s27, s25, 192")
    e("s_mul_i32 s29, s26, 24")
    e("s_add_u32 s27, s27, s29")
    e("s_mul_i32 s27, s27, 1280")
    e("s_mul_i32 s29, s24, 5120")
    e("s_add_u32 s27, s27, s29")
    e("s_add_u32 s29, s29, %d" % LW)
    for i in range(5):
        e("s_mov_b32 m0, s29")
        e("s_nop 0")
        e("buffer_load_dwordx4 v6, s[52:55], s27 offen nt lds")
        e("s_add_u32 s27, s27, 1024")
        e("s_add_u32 s29, s29, 1024")
    e("s_mov_b32 s37, 5")
    e("s_branch WO_D")
    e("NO_WO:")
    e("s_mov_b32 s37, 0")
    e("WO_D:")
    SC = [SRS[T] + i for T in range(4) for i in range(4)]
    e("v_max3_f32 v252, v%d, v%d, v%d" % (SC[0], SC[1], SC[2]))
    for i in range(3, 16, 2):
        if i + 1 < 16:
            e("v_max3_f32 v252, v252, v%d, v%d" % (SC[i], SC[i + 1]))
        else:
            e("v_max_f32 v252, v252, v%d" % SC[i])
    e("s_nop 1")
    e("v_readlane_b32 s32, v252, 0")
    e("v_readlane_b32 s33, v252, 16")
    e("v_readlane_b32 s34, v252, 32")
    e("v_readlane_b32 s35, v252, 48")
    e("s_mov_b32 s36, %s" % C_SM)
    e("s_nop 3")
    e("v_mov_b32 v252, s32")
    e("v_max_f32 v252, s33, v252")
    e("v_max_f32 v252, s34, v252")
    e("v_max_f32 v252, s35, v252")
    e("v_mul_f32 v254, s36, v252")
    e("v_mov_b32 v253, 0")
    for i in range(16):
        e("v_fma_f32 v%d, v%d, s36, -v254" % (SC[i], SC[i]))
        e("v_exp_f32 v%d, v%d" % (SC[i], SC[i]))
        e("s_nop 0")
        e("v_add_f32 v253, v253, v%d" % SC[i])
    e("s_nop 1")
    e("v_readlane_b32 s32, v253, 0")
    e("v_readlane_b32 s33, v253, 16")
    e("v_readlane_b32 s34, v253, 32")
    e("v_readlane_b32 s35, v253, 48")
    e("s_nop 3")
    e("v_mov_b32 v253, s32")
    e("v_add_f32 v253, s33, v253")
    e("v_add_f32 v253, s34, v253")
    e("v_add_f32 v253, s35, v253")
    e("v_lshlrev_b32 v7, 8, v2")
    e("v_add_u32 v7, %d, v7" % LP)
    e("v_lshl_add_u32 v4, v9, 4, v7")
    for T in range(4):
        e("ds_write_b128 v4, v[%d:%d] offset:%d" % (SRS[T], SRS[T] + 3, T * 64))
    e("v_lshlrev_b32 v4, 3, v2")
    e("ds_write_b64 v4, v[252:253] offset:%d" % LM)
    e("s_waitcnt lgkmcnt(0)")
    for b in range(3):
        e("v_add_u32 v4, v7, v%d" % (13 + b))
        for a in range(0, 8, 2):
            e("ds_read2_b32 v[%d:%d], v4 offset0:%d offset1:%d" %
              (PR + b * 8 + a, PR + b * 8 + a + 1, a * 8, (a + 1) * 8))
    for i in range(24):
        e("v_mov_b32 v%d, 0" % (AR + i))
    e("s_waitcnt lgkmcnt(0)")
    e("s_cmp_eq_u32 s37, 0")
    e("s_cbranch_scc1 PV_B")
    for variant, extra in (("A", 5), ("B", 0)):
        if variant == "B":
            e("PV_B:")
        for n in range(24):
            a, b = n // 3, n % 3
            r = VR + n * 4
            e("s_waitcnt vmcnt(%d)" % (23 + extra - n))
            for d in range(4):
                e("v_lshlrev_b32 v3, 16, v%d" % (r + d))
                e("v_and_b32 v4, 0xffff0000, v%d" % (r + d))
                e("v_fmac_f32 v%d, v3, v%d" % (AR + b * 8 + 2 * d, PR + b * 8 + a))
                e("v_fmac_f32 v%d, v4, v%d" % (AR + b * 8 + 2 * d + 1, PR + b * 8 + a))
        if variant == "A":
            e("s_branch PV_D")
    e("PV_D:")
    stamp(6)
    for b in range(3):
        e("ds_write_b128 v5, v[%d:%d] offset:%d" % (AR + b * 8, AR + b * 8 + 3, LA + b * 72 * 32))
        e("ds_write_b128 v5, v[%d:%d] offset:%d" % (AR + b * 8 + 4, AR + b * 8 + 7, LA + b * 72 * 32 + 16))
    e("s_waitcnt vmcnt(0) lgkmcnt(0)")
    e("s_barrier")
    stamp(7)
    e("s_cmp_ge_u32 s24, 3")
    e("s_cbranch_scc1 GATE")
    e("v_mov_b32 v4, 0")
    for i in range(4):
        e("ds_read_b128 v[%d:%d], v4 offset:%d" % (32 + 4 * i, 35 + 4 * i, LM + 16 * i))
    e("s_waitcnt lgkmcnt(0)")
    e("v_max3_f32 v3, v32, v34, v36")
    e("v_max3_f32 v3, v3, v38, v40")
    e("v_max3_f32 v3, v3, v42, v44")
    e("v_max_f32 v3, v3, v46")
    e("v_mov_b32 v7, 0")
    for w in range(NW):
        e("v_sub_f32 v%d, v%d, v3" % (48 + w, 32 + 2 * w))
        e("v_mul_f32 v%d, s36, v%d" % (48 + w, 48 + w))
        e("v_exp_f32 v%d, v%d" % (48 + w, 48 + w))
        e("s_nop 0")
        e("v_fmac_f32 v7, v%d, v%d" % (48 + w, 33 + 2 * w))
    reduce_dump(60, 48, 80)
    e("v_mov_b32 v81, s38")
    e("s_lshl_b32 s27, s31, 11")
    e("s_add_u32 s27, s27, %d" % WS_P)
    e("v_lshlrev_b32 v4, 3, v0")
    e("buffer_store_dwordx2 v[80:81], v4, s[20:23], s27 offen sc1")
    e("v_mov_b32 v84, v3")
    e("v_mov_b32 v85, v7")
    e("v_mov_b32 v86, s38")
    e("v_mov_b32 v87, s38")
    e("v_cmp_eq_u32 vcc, 0, v0")
    e("s_and_saveexec_b64 s[40:41], vcc")
    e("buffer_store_dwordx4 v[84:87], v4, s[20:23], s27 offen offset:1536 sc1")
    e("s_mov_b64 exec, s[40:41]")
    stamp(8)
    e("s_cmp_eq_u32 s24, 0")
    e("s_cbranch_scc0 HOP1_D")
    e("s_lshl_b32 s27, s25, 14")
    e("s_add_u32 s27, s27, %d" % WS_P)
    e("s_mul_i32 s29, s26, 192")
    e("v_min_u32 v3, 23, v1")
    e("v_lshlrev_b32 v3, 3, v3")
    e("v_add_u32 v3, s29, v3")
    e("v_mov_b32 v4, 1536")
    e("s_add_u32 s32, s27, 4096")
    e("s_add_u32 s33, s27, 8192")
    e("s_add_u32 s34, s27, 12288")
    poll_begin("PO")
    for s_ in range(NSPLIT):
        sb = ["s27", "s32", "s33", "s34"][s_ // 2]
        e("buffer_load_dwordx2 v[%d:%d], v3, s[20:23], %s offen offset:%d sc1" % (64 + 2 * s_, 65 + 2 * s_, sb, (s_ % 2) * 2048))
        e("buffer_load_dwordx4 v[%d:%d], v4, s[20:23], %s offen offset:%d sc1" % (80 + 4 * s_, 83 + 4 * s_, sb, (s_ % 2) * 2048))
    e("s_waitcnt vmcnt(0)")
    e("v_cmp_ne_u32 vcc, s38, v65")
    for s_ in range(NSPLIT):
        if s_ > 0:
            e("v_cmp_ne_u32 s[42:43], s38, v%d" % (65 + 2 * s_))
            e("s_or_b64 vcc, vcc, s[42:43]")
        e("v_cmp_ne_u32 s[42:43], s38, v%d" % (82 + 4 * s_))
        e("s_or_b64 vcc, vcc, s[42:43]")
    poll_end("PO")
    stamp(9)
    e("v_mov_b32 v3, v80")
    for s_ in range(1, NSPLIT):
        e("v_max_f32 v3, v3, v%d" % (80 + 4 * s_))
    e("v_mov_b32 v8, 0")
    e("v_mov_b32 v9, 0")
    for s_ in range(NSPLIT):
        e("v_sub_f32 v10, v%d, v3" % (80 + 4 * s_))
        e("v_mul_f32 v10, s36, v10")
        e("v_exp_f32 v10, v10")
        e("s_nop 0")
        e("v_fmac_f32 v8, v10, v%d" % (64 + 2 * s_))
        e("v_fmac_f32 v9, v10, v%d" % (81 + 4 * s_))
    e("v_rcp_f32 v9, v9")
    e("s_nop 0")
    e("v_mul_f32 v8, v8, v9")
    rbf(8, 10)
    e("v_lshlrev_b32 v3, 2, v1")
    e("ds_write_b32 v3, v8 offset:%d" % LO)
    e("s_waitcnt lgkmcnt(0)")
    e("s_branch HOP1_D")
    e("GATE:")
    e("s_cmp_ge_u32 s24, 6")
    e("s_cbranch_scc1 HOP1_D")
    e("s_sub_u32 s33, s24, 3")
    e("s_lshl_b32 s33, s33, 8")
    e("s_add_u32 s33, s33, s2")
    e("s_cmp_ge_u32 s33, 640")
    e("s_cbranch_scc1 HOP1_D")
    srd(80, 64, 65, 3072)
    srd(84, 66, 67, 3072)
    srd(88, 68, 69, 3072)
    srd(92, 70, 71, 2)
    e("v_lshlrev_b32 v8, 4, v1")
    for j in range(3):
        e("buffer_load_dwordx4 v[%d:%d], v8, s[80:83], 0 offen offset:%d" % (140 + 4 * j, 143 + 4 * j, j * 1024))
        e("buffer_load_dwordx4 v[%d:%d], v8, s[84:87], 0 offen offset:%d" % (152 + 4 * j, 155 + 4 * j, j * 1024))
        e("buffer_load_dwordx4 v[%d:%d], v8, s[88:91], 0 offen offset:%d" % (164 + 4 * j, 167 + 4 * j, j * 1024))
    e("v_mov_b32 v9, 0")
    e("buffer_load_ushort v176, v9, s[92:95], 0 offen")
    e("v_mul_u32_u24 v6, 2560, v2")
    e("v_add_u32 v6, %d, v6" % LX)
    e("v_lshl_add_u32 v7, v1, 3, v6")
    for i in range(5):
        e("ds_read_b64 v[%d:%d], v7 offset:%d" % (20 + 2 * i, 21 + 2 * i, i * 512))
    e("s_waitcnt lgkmcnt(0)")
    layernorm(20, 10, 30, 40)
    for i in range(5):
        e("ds_write_b64 v7, v[%d:%d] offset:%d" % (20 + 2 * i, 21 + 2 * i, i * 512))
    e("v_mov_b32 v9, s33")
    e("v_lshl_add_u32 v10, v9, 2, v6")
    e("s_waitcnt lgkmcnt(0)")
    e("ds_read_b32 v11, v10")
    e("v_mov_b32 v12, 0")
    e("s_mov_b32 s34, 0x3d372713")
    e("s_mov_b32 s35, %s" % C_GELU)
    e("s_waitcnt vmcnt(0) lgkmcnt(0)")
    for j in range(3):
        for d in range(4):
            for half in range(2):
                op = "v_lshlrev_b32 v%d, 16, v%d" if half == 0 else "v_and_b32 v%d, 0xffff0000, v%d"
                e(op % (13, 140 + 4 * j + d))
                e(op % (14, 152 + 4 * j + d))
                e(op % (15, 164 + 4 * j + d))
                e("v_mul_f32 v13, v13, v11")
                rbf(13, 16)
                e("v_add_f32 v13, v13, v14")
                rbf(13, 16)
                e("v_mul_f32 v16, v13, v13")
                e("v_mul_f32 v16, s34, v16")
                e("v_fma_f32 v16, v16, v13, v13")
                e("v_mul_f32 v16, s35, v16")
                e("v_exp_f32 v16, v16")
                e("s_nop 0")
                e("v_add_f32 v16, 1.0, v16")
                e("v_rcp_f32 v16, v16")
                e("s_nop 0")
                e("v_mul_f32 v13, v13, v16")
                rbf(13, 16)
                e("v_fmac_f32 v12, v13, v15")
    wave_sum(12, 37)
    e("v_mov_b32 v12, s37")
    rbf(12, 16)
    e("v_lshlrev_b32 v176, 16, v176")
    e("v_add_f32 v12, v12, v176")
    rbf(12, 16)
    e("v_mul_f32 v13, 0xbfb8aa3b, v12")
    e("v_exp_f32 v13, v13")
    e("s_nop 0")
    e("v_add_f32 v13, 1.0, v13")
    e("v_rcp_f32 v13, v13")
    e("s_nop 0")
    e("v_mul_f32 v12, v12, v13")
    rbf(12, 16)
    e("v_mov_b32 v13, s38")
    e("v_lshlrev_b32 v9, 3, v9")
    e("s_mov_b32 s27, %d" % WS_G)
    e("v_cmp_eq_u32 vcc, 0, v1")
    e("s_and_saveexec_b64 s[40:41], vcc")
    e("buffer_store_dwordx2 v[12:13], v9, s[20:23], s27 offen sc1")
    e("s_mov_b64 exec, s[40:41]")
    e("HOP1_D:")
    e("s_barrier")
    stamp(10)
    e("v_mul_u32_u24 v3, 52429, v0")
    e("v_lshrrev_b32 v3, 22, v3")
    e("v_mul_u32_u24 v4, 80, v3")
    e("v_sub_u32 v4, v0, v4")
    e("v_cmp_gt_u32 vcc, 480, v0")
    e("s_and_saveexec_b64 s[40:41], vcc")
    e("s_cbranch_execz GEMV_D")
    e("v_mul_u32_u24 v5, 5120, v3")
    e("v_lshl_add_u32 v5, v4, 4, v5")
    e("v_add_u32 v5, %d, v5" % LW)
    e("v_lshlrev_b32 v6, 4, v3")
    e("ds_read_b128 v[20:23], v6 offset:%d" % LO)
    for i in range(4):
        e("ds_read_b128 v[%d:%d], v5 offset:%d" % (32 + 4 * i, 35 + 4 * i, i * 1280))
    for c in range(8):
        e("v_mov_b32 v%d, 0" % (48 + c))
    e("s_waitcnt lgkmcnt(0)")
    for i in range(4):
        for d in range(4):
            e("v_lshlrev_b32 v7, 16, v%d" % (32 + 4 * i + d))
            e("v_and_b32 v8, 0xffff0000, v%d" % (32 + 4 * i + d))
            e("v_fmac_f32 v%d, v7, v%d" % (48 + 2 * d, 20 + i))
            e("v_fmac_f32 v%d, v8, v%d" % (49 + 2 * d, 20 + i))
    e("v_mul_u32_u24 v5, 2560, v3")
    e("v_lshl_add_u32 v5, v4, 5, v5")
    e("ds_write_b128 v5, v[48:51] offset:%d" % LF)
    e("ds_write_b128 v5, v[52:55] offset:%d" % (LF + 16))
    e("GEMV_D:")
    e("s_mov_b64 exec, s[40:41]")
    e("s_waitcnt lgkmcnt(0)")
    e("s_barrier")
    e("v_lshlrev_b32 v3, 2, v0")
    for r in range(6):
        e("ds_read_b32 v%d, v3 offset:%d" % (20 + r, LF + r * 2560))
    e("v_cmp_gt_u32 vcc, 128, v0")
    e("s_and_saveexec_b64 s[40:41], vcc")
    for r in range(6):
        e("ds_read_b32 v%d, v3 offset:%d" % (30 + r, LF + r * 2560 + 2048))
    e("s_mov_b64 exec, s[40:41]")
    e("s_waitcnt lgkmcnt(0)")
    for r in range(1, 6):
        e("v_add_f32 v20, v20, v%d" % (20 + r))
        e("v_add_f32 v30, v30, v%d" % (30 + r))
    e("v_mov_b32 v21, s38")
    e("v_mov_b32 v31, s38")
    e("s_mul_i32 s27, s2, 5120")
    e("s_add_u32 s27, s27, %d" % WS_F)
    e("v_lshlrev_b32 v3, 3, v0")
    e("buffer_store_dwordx2 v[20:21], v3, s[20:23], s27 offen sc1")
    e("s_add_u32 s27, s27, 4096")
    e("s_and_saveexec_b64 s[40:41], vcc")
    e("buffer_store_dwordx2 v[30:31], v3, s[20:23], s27 offen sc1")
    e("s_mov_b64 exec, s[40:41]")
    stamp(11)
    e("s_cmp_ge_u32 s2, 40")
    e("s_cbranch_scc1 K_END")
    e("s_cmp_eq_u32 s24, 0")
    e("s_cbranch_scc0 FIN_G_D")
    e("v_and_b32 v3, 15, v1")
    e("s_lshl_b32 s27, s2, 5")
    e("v_lshlrev_b32 v62, 1, v3")
    e("buffer_load_ushort v61, v62, s[44:47], s27 offen")
    e("s_lshl_b32 s29, s2, 4")
    e("v_add_u32 v10, s29, v3")
    e("v_and_b32 v11, 7, v10")
    e("v_lshlrev_b32 v11, 4, v11")
    e("v_lshrrev_b32 v12, 3, v10")
    e("v_and_b32 v12, 3, v12")
    e("v_lshl_add_u32 v11, v12, 2, v11")
    e("v_lshlrev_b32 v10, 3, v10")
    e("s_mov_b32 s29, %d" % WS_G)
    poll_begin("PG")
    e("buffer_load_dword v14, v11, s[56:59], 0 offen offset:128 sc1")
    e("buffer_load_dwordx2 v[12:13], v10, s[20:23], s29 offen sc1")
    e("s_waitcnt vmcnt(0)")
    e("v_cmp_eq_u32 vcc, 0, v14")
    e("v_cmp_ne_u32 s[42:43], v14, v13")
    e("s_or_b64 vcc, vcc, s[42:43]")
    poll_end("PG")
    e("v_mov_b32 v60, v12")
    e("FIN_G_D:")
    e("v_lshrrev_b32 v3, 3, v1")
    e("v_lshl_add_u32 v3, v2, 5, v3")
    e("v_and_b32 v4, 7, v3")
    e("v_lshlrev_b32 v4, 4, v4")
    e("v_mul_u32_u24 v3, 5120, v3")
    e("v_and_b32 v5, 7, v1")
    e("v_lshl_add_u32 v3, v5, 4, v3")
    e("s_lshl_b32 s27, s2, 7")
    e("s_add_u32 s27, s27, %d" % WS_F)
    e("s_add_u32 s29, s27, %d" % (16 * 5120))
    poll_begin("PF")
    e("buffer_load_dwordx4 v[40:43], v4, s[56:59], 0 offen offset:128 sc1")
    for k in range(4):
        sb = "s27" if k < 2 else "s29"
        e("buffer_load_dwordx4 v[%d:%d], v3, s[20:23], %s offen offset:%d sc1" % (20 + 4 * k, 23 + 4 * k, sb, 0))
        if k % 2 == 0:
            e("s_add_u32 %s, %s, %d" % (sb, sb, 8 * 5120))
    e("s_sub_u32 s27, s27, %d" % (8 * 5120))
    e("s_sub_u32 s29, s29, %d" % (8 * 5120))
    e("s_waitcnt vmcnt(0)")
    e("v_cmp_eq_u32 vcc, 0, v40")
    for k in range(4):
        if k > 0:
            e("v_cmp_eq_u32 s[42:43], 0, v%d" % (40 + k))
            e("s_or_b64 vcc, vcc, s[42:43]")
        e("v_cmp_ne_u32 s[42:43], v%d, v%d" % (40 + k, 21 + 4 * k))
        e("s_or_b64 vcc, vcc, s[42:43]")
        e("v_cmp_ne_u32 s[42:43], v%d, v%d" % (40 + k, 23 + 4 * k))
        e("s_or_b64 vcc, vcc, s[42:43]")
    poll_end("PF")
    stamp(12)
    for k in range(1, 4):
        e("v_add_f32 v20, v20, v%d" % (20 + 4 * k))
        e("v_add_f32 v22, v22, v%d" % (22 + 4 * k))
    e("v_mov_b32 v21, v22")
    e("v_lshlrev_b32 v5, 3, v0")
    e("ds_write_b64 v5, v[20:21] offset:%d" % LR)
    e("s_waitcnt lgkmcnt(0)")
    e("s_barrier")
    e("s_cmp_eq_u32 s24, 0")
    e("s_cbranch_scc0 K_END")
    e("v_and_b32 v3, 15, v1")
    e("v_lshrrev_b32 v4, 4, v1")
    e("v_lshlrev_b32 v5, 10, v4")
    e("v_lshl_add_u32 v5, v3, 2, v5")
    for k in range(16):
        e("ds_read_b32 v%d, v5 offset:%d" % (32 + k, LR + k * 64))
    e("s_lshl_b32 s27, s2, 5")
    e("s_waitcnt lgkmcnt(0)")
    for k in range(1, 16):
        e("v_add_f32 v32, v32, v%d" % (32 + k))
    e("v_lshlrev_b32 v5, 2, v1")
    e("ds_write_b32 v5, v32 offset:%d" % (LR + 8192))
    e("v_lshlrev_b32 v6, 2, v3")
    e("s_waitcnt lgkmcnt(0)")
    for k in range(4):
        e("ds_read_b32 v%d, v6 offset:%d" % (40 + k, LR + 8192 + k * 64))
    e("s_waitcnt lgkmcnt(0)")
    e("v_add_f32 v40, v40, v41")
    e("v_add_f32 v42, v42, v43")
    e("v_add_f32 v40, v40, v42")
    rbf(40, 10)
    e("v_mul_f32 v40, v40, v60")
    rbf(40, 10)
    e("v_lshlrev_b32 v9, 16, v61")
    e("v_add_f32 v40, v40, v9")
    e("v_cvt_pk_bf16_f32 v40, v40, v40")
    srd(92, 76, 77, 1280)
    e("v_cmp_gt_u32 vcc, 16, v1")
    e("s_and_saveexec_b64 s[40:41], vcc")
    e("buffer_store_short v40, v62, s[92:95], s27 offen")
    stamp(13)
    e("K_END:")
    e("s_endpgm")

e(HEADER.rstrip())
e("; @launch grid=(%d,1,1) block=(512,1,1) lds=%d" % (A_WG, A_LDS))
e('.amdgcn_target "amdgcn-amd-amdhsa--gfx950"')
e(".text")
gen_main()
e('.section .rodata,"a"')
descriptor(NAME + "_kernel", 256)
open(OUT, "w").write("\n".join(L) + "\n")
```
